```python
import torch

def _softmax(x, axis=-1):
    return torch.softmax(x, dim=axis)
def _gelu(x):
    return torch.nn.functional.gelu(x, approximate="tanh")
def _silu(x):
    return torch.nn.functional.silu(x)
def _sigmoid(x):
    return torch.sigmoid(x)
def _layernorm(x, axis=-1, eps=1e-5):
    m = x.mean(dim=axis, keepdim=True)
    v = x.var(dim=axis, keepdim=True, unbiased=False)
    return (x - m) / torch.sqrt(v + eps)
def _scatter_add(tgt, idx, src, axis=0):
    return tgt.clone().index_add_(axis, idx, src)
def _segment_sum(src, seg, n):
    out = torch.zeros((n,) + src.shape[1:], dtype=src.dtype)
    return out.index_add_(0, seg, src)
def _pad(x, pw):
    flat = tuple(v for pair in reversed(pw) for v in pair)
    return torch.nn.functional.pad(x, flat)

kernel_name = 'standalone__seq2seq_rnn_t_joint__speech'

def setup_inputs():

    _w = (lambda a: (lambda t: t.to(torch.bfloat16) if t.is_floating_point() else t)(torch.as_tensor(a)))
    B, T, D, K = 2, 4000, 144, 15
    U = 8
    sc = (1.0 / (K * D)) ** 0.5
    sd = (1.0 / D) ** 0.5
    return {
        "x": _w((lambda *s: torch.randn(*s, dtype=torch.bfloat16) * 0.2)(B, T, D) * 0.5),
        "w1": _w((lambda *s: torch.randn(*s, dtype=torch.bfloat16) * 3.2)(K, D, D) * sc),
        "w2": _w((lambda *s: torch.randn(*s, dtype=torch.bfloat16) * 3.2)(K, D, D) * sc),
        "g": _w((lambda *s: torch.randn(*s, dtype=torch.bfloat16) * 3.2)(B, U, D) * 0.5),
        "w_f": _w((lambda *s: torch.randn(*s, dtype=torch.bfloat16) * 3.2)(D, D) * sd),
        "w_g": _w((lambda *s: torch.randn(*s, dtype=torch.bfloat16) * 3.2)(D, D) * sd),
        "w_o": _w((lambda *s: torch.randn(*s, dtype=torch.bfloat16) * 3.2)(D, D) * sd),
    }

def reference(x, w1, w2, g, w_f, w_g, w_o):
    B, T, D = x.shape
    K = w1.shape[0]
    pad = K // 2
    xp = _pad(x, ((0,0),(pad,pad),(0,0)))
    h = torch.zeros_like(x)
    for i in range(K):
        h = h + torch.einsum("btc,cd->btd", xp[:, i:i+T, :], w1[i])
    h = _gelu(h)[:, ::2, :]
    T1 = h.shape[1]
    hp = _pad(h, ((0,0),(pad,pad),(0,0)))
    f = torch.zeros_like(h)
    for i in range(K):
        f = f + torch.einsum("btc,cd->btd", hp[:, i:i+T1, :], w2[i])
    f = _gelu(f)[:, ::2, :]
    fe = torch.einsum("btd,de->bte", f, w_f)
    ge = torch.einsum("bud,de->bue", g, w_g)
    j = torch.tanh(fe[:, :, None, :] + ge[:, None, :, :])
    return torch.einsum("btud,dv->btuv", j, w_o)
```

```python
class Em:
    def __init__(self):
        self.lines = []
    def __call__(self, s):
        for l in s.strip("\n").split("\n"):
            self.lines.append("    " + l.strip() if not l.strip().endswith(":") else l.strip())
    def text(self):
        return "\n".join(self.lines) + "\n"

def v(a, n=1):
    return f"v{a}" if n == 1 else f"v[{a}:{a+n-1}]"
def a_(a, n=1):
    return f"a{a}" if n == 1 else f"a[{a}:{a+n-1}]"
def s(a, n=1):
    return f"s{a}" if n == 1 else f"s[{a}:{a+n-1}]"

LOG2E = 1.4426950408889634
import struct
def f2h(x):
    return "0x%08x" % struct.unpack("<I", struct.pack("<f", x))[0]
GC1 = -2.0 * LOG2E * 0.7978845608028654
GC2 = GC1 * 0.044715
TS = 2.0 * LOG2E

def srd(e, d, base, size):
    e(f"s_mov_b32 s{d}, s{base}")
    e(f"s_and_b32 s{d+1}, s{base+1}, 0xffff")
    e(f"s_mov_b32 s{d+2}, {size}")
    e(f"s_mov_b32 s{d+3}, 0x20000")

def gelu(e, regs, tmp, c1, c2):
    n = len(regs)
    for i in range(n): e(f"v_mul_f32 v{tmp[i]}, v{regs[i]}, v{regs[i]}")
    for i in range(n): e(f"v_fma_f32 v{tmp[i]}, v{tmp[i]}, v{c2}, v{c1}")
    for i in range(n): e(f"v_mul_f32 v{tmp[i]}, v{tmp[i]}, v{regs[i]}")
    for i in range(n): e(f"v_exp_f32 v{tmp[i]}, v{tmp[i]}")
    if n < 2: e("s_nop 0")
    for i in range(n): e(f"v_add_f32 v{tmp[i]}, 1.0, v{tmp[i]}")
    for i in range(n): e(f"v_rcp_f32 v{tmp[i]}, v{tmp[i]}")
    if n < 2: e("s_nop 0")
    for i in range(n): e(f"v_mul_f32 v{regs[i]}, v{regs[i]}, v{tmp[i]}")

MF32 = "v_mfma_f32_16x16x32_bf16"
MF16 = "v_mfma_f32_16x16x16_bf16"

WS_P_BYTES = 2 * 1008 * 2592
WS_GE = 5242880
WS_SIZE = WS_GE + 2 * 8192

def lane_parts(e, vl, vm, vg, vrr, vc4):
    e(f"v_and_b32 v{vm}, 15, v{vl}")
    e(f"v_lshrrev_b32 v{vg}, 4, v{vl}")
    e(f"v_lshrrev_b32 v{vrr}, 2, v{vm}")
    e(f"v_and_b32 v{vc4}, 3, v{vl}")

def wimg_dma(e, srd_, vtid, vtmp, vtmp2, lds_base, sw, stmp, nins=11):
    for i in range(nins):
        e(f"v_add_u32 v{vtmp}, {256*i}, v{vtid}")
        e(f"v_mul_u32_u24 v{vtmp2}, 27595, v{vtmp}")
        e(f"v_lshrrev_b32 v{vtmp2}, 22, v{vtmp2}")
        e(f"v_lshlrev_b32 v{vtmp}, 4, v{vtmp}")
        e(f"v_lshlrev_b32 v{vtmp2}, 7, v{vtmp2}")
        e(f"v_sub_u32 v{vtmp}, v{vtmp}, v{vtmp2}")
        e(f"s_add_u32 m0, s{sw}, {lds_base + 4096*i}")
        e("s_nop 0")
        e(f"buffer_load_dwordx4 v{vtmp}, s[{srd_}:{srd_+3}], 0 offen lds")
```

```python
from common import *

RING = 102400
W2B = 4864
HB = 78848
NSLOT = 15

def gen_k1(e, name):
    SX, SW1, SW2, SWS = 4, 8, 12, 16
    sG, sJ, sB, sGG, sW, sT0 = 28, 29, 30, 31, 32, 33
    sA, sBt, sC = 34, 35, 36
    sRingW, sW1024 = 37, 38
    e(f"{name}:")
    e("""
    s_load_dwordx4 s[20:23], s[0:1], 0
    s_load_dwordx2 s[24:25], s[0:1], 16
    s_load_dwordx2 s[26:27], s[0:1], 72
    s_cmp_ge_u32 s2, 256
    s_cbranch_scc1 K1_END
    """)
    e(f"""
    s_and_b32 s{sA}, s2, 7
    s_lshr_b32 s{sBt}, s2, 3
    s_cmp_ge_u32 s{sBt}, 27
    s_cbranch_scc1 K1_TAILMAP
    s_mul_i32 s{sC}, s{sBt}, 57
    s_lshr_b32 s{sC}, s{sC}, 9
    s_mul_i32 s{sG}, s{sA}, 3
    s_add_u32 s{sG}, s{sG}, s{sC}
    s_mul_i32 s{sC}, s{sC}, 9
    s_sub_u32 s{sJ}, s{sBt}, s{sC}
    s_branch K1_MAPPED
    K1_TAILMAP:
    s_and_b32 s{sC}, s{sA}, 1
    s_mul_i32 s{sC}, s{sC}, 5
    s_add_u32 s{sC}, s{sC}, s{sBt}
    s_sub_u32 s{sJ}, s{sC}, 27
    s_lshr_b32 s{sG}, s{sA}, 1
    s_cmp_lt_u32 s{sJ}, 9
    s_cbranch_scc1 K1_TAILOK
    s_cmp_eq_u32 s{sG}, 0
    s_cbranch_scc1 K1_AUX
    s_branch K1_END
    K1_TAILOK:
    s_add_u32 s{sG}, s{sG}, 24
    K1_MAPPED:
    s_cmp_ge_u32 s{sG}, 14
    s_cselect_b32 s{sB}, 1, 0
    s_mul_i32 s{sC}, s{sB}, 14
    s_sub_u32 s{sGG}, s{sG}, s{sC}
    s_mul_i32 s{sT0}, s{sGG}, 72
    """)
    vL, vM, vG_, vRR, vC4 = 1, 2, 3, 4, 5
    e("v_lshrrev_b32 v6, 6, v0")
    e(f"v_and_b32 v{vL}, 63, v0")
    e(f"v_readfirstlane_b32 s{sW}, v6")
    lane_parts(e, vL, vM, vG_, vRR, vC4)
    e("s_waitcnt lgkmcnt(0)")
    e(f"""
    s_mul_i32 s{sC}, s{sB}, 1152000
    s_add_u32 s{SX}, s20, s{sC}
    s_addc_u32 s{SX+1}, s21, 0
    s_and_b32 s{SX+1}, s{SX+1}, 0xffff
    s_mov_b32 s{SX+2}, 1152000
    s_mov_b32 s{SX+3}, 0x20000
    """)
    srd(e, SW1, 22, 622080)
    srd(e, SW2, 24, 622080)
    srd(e, SWS, 26, WS_SIZE)
    e(f"s_lshl_b32 s{sW1024}, s{sW}, 10")
    e(f"""
    s_lshl_b32 s{sC}, s{sT0}, 1
    s_sub_u32 s{sC}, s{sC}, 12
    s_mul_i32 s{sC}, s{sC}, 576
    """)
    for i in range(25):
        t, t2 = 6 + 2 * (i & 1), 7 + 2 * (i & 1)
        e(f"v_add_u32 v{t}, {256*i}, v0")
        e(f"v_mul_u32_u24 v{t2}, 113360, v{t}")
        e(f"v_lshrrev_b32 v{t2}, 22, v{t2}")
        e(f"v_sub_u32 v{t}, v{t}, v{t2}")
        e(f"v_lshl_add_u32 v{t}, v{t}, 4, s{sC}")
        e(f"s_add_u32 m0, s{sW1024}, {4096*i}")
        e("s_nop 0")
        e(f"buffer_load_dwordx4 v{t}, s[{SX}:{SX+3}], 0 offen lds")
    vP0a, vP0b, vPn, vP8 = 10, 11, 12, 13
    vK, vT = 6, 7
    e(f"""
    v_lshrrev_b32 v{vT}, 1, v{vL}
    v_and_b32 v{vK}, 0x13, v{vT}
    v_and_b32 v8, 4, v{vT}
    v_lshlrev_b32 v8, 1, v8
    v_or_b32 v{vK}, v{vK}, v8
    v_and_b32 v8, 8, v{vT}
    v_lshrrev_b32 v8, 1, v8
    v_or_b32 v{vK}, v{vK}, v8
    v_and_b32 v8, 1, v{vL}
    v_lshlrev_b32 v8, 4, v8
    s_lshl_b32 s{sC}, s{sJ}, 5
    v_add_u32 v8, s{sC}, v8
    s_lshl_b32 s{sA}, s{sW}, 6
    v_add_u32 v9, s{sA}, v{vK}
    v_mul_u32_u24 v{vPn}, 288, v9
    v_add_u32 v{vPn}, v{vPn}, v8
    v_subrev_u32 v{vP0a}, {144*288}, v{vPn}
    v_subrev_u32 v{vP0b}, {112*288}, v{vPn}
    v_add_u32 v{vPn}, {144*288}, v{vPn}
    s_mul_i32 s{sA}, s{sW}, 576
    s_add_u32 s{sA}, s{sA}, 112
    v_add_u32 v9, s{sA}, v{vK}
    v_mul_u32_u24 v{vP8}, 288, v9
    v_add_u32 v{vP8}, v{vP8}, v8
    s_mul_i32 s{sRingW}, s{sW}, {NSLOT*1024}
    s_add_u32 s{sRingW}, s{sRingW}, {RING}
    """)
    units = [(0, P) for P in range(8)] + [(1, P) for P in range(8)] + [(2, 0), (2, 1)]
    def issue_unit(u):
        c, P = units[u]
        slot = u % NSLOT
        e(f"s_add_u32 m0, s{sRingW}, {slot*1024}")
        if c < 2 and P == 0:
            e("s_nop 0")
            e(f"buffer_load_dwordx4 v{vP0a if c == 0 else vP0b}, s[{SW1}:{SW1+3}], 0 offen lds")
        elif c < 2:
            e(f"s_mov_b32 s{sA}, {(288*(P-1) + 32*c) * 288}")
            e(f"buffer_load_dwordx4 v{vPn}, s[{SW1}:{SW1+3}], s{sA} offen lds")
        else:
            e(f"s_mov_b32 s{sA}, {P*288*288}")
            e(f"buffer_load_dwordx4 v{vP8}, s[{SW1}:{SW1+3}], s{sA} offen lds")
    for u in range(NSLOT): issue_unit(u)
    vXa, vX8, vWr = 14, 15, 9
    e(f"""
    v_mul_u32_u24 v{vXa}, 5920, v{vM}
    v_lshl_add_u32 v{vXa}, v{vG_}, 4, v{vXa}
    s_mul_i32 s{sA}, s{sW}, 1184
    s_add_u32 s{sA}, s{sA}, 512
    v_add_u32 v{vX8}, s{sA}, v{vXa}
    s_lshl_b32 s{sA}, s{sW}, 7
    v_add_u32 v{vXa}, s{sA}, v{vXa}
    v_lshrrev_b32 v6, 1, v{vG_}
    v_lshlrev_b32 v6, 4, v6
    v_and_b32 v7, 1, v{vG_}
    v_lshl_add_u32 v6, v7, 2, v6
    v_add_u32 v6, v6, v{vRR}
    v_lshlrev_b32 v6, 5, v6
    v_lshl_add_u32 v6, v{vC4}, 3, v6
    v_add_u32 v{vWr}, s{sRingW}, v6
    """)
    ACC, XA, XB, WF = 16, 56, 124, 192
    def w2_loads():
        e(f"s_mul_i32 s{sA}, s{sJ}, 4608")
        for i in range(17):
            t, t2 = 200 + 2 * (i & 1), 201 + 2 * (i & 1)
            e(f"v_add_u32 v{t}, {256*i}, v0")
            e(f"v_mul_u32_u24 v{t2}, 14564, v{t}")
            e(f"v_lshrrev_b32 v{t2}, 22, v{t2}")
            e(f"v_mul_u32_u24 v{t2}, {41472-4608}, v{t2}")
            e(f"v_lshl_add_u32 v{t}, v{t}, 4, v{t2}")
            e(f"buffer_load_dwordx4 a[{4*i}:{4*i+3}], v{t}, s[{SW2}:{SW2+3}], s{sA} offen")
    e("s_waitcnt vmcnt(15)")
    e("s_barrier")
    def xread(dst, J, c):
        if c < 2: e(f"ds_read_b128 v[{dst+4*J}:{dst+4*J+3}], v{vXa} offset:{J*592 + c*64}")
        else: e(f"ds_read_b128 v[{dst+4*J}:{dst+4*J+3}], v{vX8} offset:{J*592}")
    def wread(u):
        slot = u % NSLOT
        d = WF + 4 * (u & 1)
        e(f"ds_read_b64_tr_b16 v[{d}:{d+1}], v{vWr} offset:{slot*1024}")
        e(f"ds_read_b64_tr_b16 v[{d+2}:{d+3}], v{vWr} offset:{slot*1024+256}")
    def vm_for(u):
        if u <= 2: return 14
        if u <= 14: return 34 - u
        return 34 - u
    for J in range(17): xread(XA, J, 0)
    e("s_waitcnt vmcnt(14)")
    wread(0)
    pend = []
    for u, (c, P) in enumerate(units):
        e("s_waitcnt lgkmcnt(0)")
        if u + NSLOT < len(units):
            issue_unit(u + NSLOT)
            if u + NSLOT == len(units) - 1: w2_loads()
        if u + 1 < len(units):
            n = u + 1
            issued_after = min(len(units) - 1, u + NSLOT) - n
            if u + NSLOT >= len(units) - 1: issued_after += 17
            e(f"s_waitcnt vmcnt({issued_after})")
            wread(n)
        if c == 0:
            js = [j for j in range(17) if j * 8 // 17 == P]
            for J in js: xread(XB, J, 1)
        elif c == 1:
            js = [j for j in range(11) if j * 8 // 11 == P]
            for J in js: xread(XA, J, 2)
        X = XB if c == 1 else XA
        d = WF + 4 * (u & 1)
        for jt in range(10):
            cin = "0" if u == 0 else f"v[{ACC+4*jt}:{ACC+4*jt+3}]"
            e(f"{MF32} v[{ACC+4*jt}:{ACC+4*jt+3}], v[{d}:{d+3}], v[{X+4*(jt+P)}:{X+4*(jt+P)+3}], {cin}")
    e(f"v_lshlrev_b32 v6, 4, v{vL}")
    e(f"v_add_u32 v7, s{sRingW}, v6")
    e("s_nop 7")
    for jt in range(10):
        e(f"ds_write_b128 v7, v[{ACC+4*jt}:{ACC+4*jt+3}] offset:{jt*1024}")
    e(f"v_add_u32 v8, {RING}, v6")
    e(f"v_add_u32 v8, s{sW1024}, v8")
    e("s_waitcnt lgkmcnt(0)")
    e("s_barrier")
    R = 56
    for k in range(3):
        for src in range(4):
            d = R + 16 * k + 4 * src
            e(f"ds_read_b128 v[{d}:{d+3}], v8 offset:{src*NSLOT*1024 + k*4096}")
    vC1, vC2 = 10, 11
    e(f"v_mov_b32 v{vC1}, {f2h(GC1)}")
    e(f"v_mov_b32 v{vC2}, {f2h(GC2)}")
    e(f"v_mul_u32_u24 v12, 10, v{vM}")
    e(f"v_add_u32 v12, s{sW}, v12")
    e(f"s_lshl_b32 s{sA}, s{sT0}, 1")
    e(f"s_sub_u32 s{sA}, s{sA}, 8")
    e(f"s_movk_i32 s{sBt}, 2000")
    e("s_waitcnt lgkmcnt(0)")
    for k in range(3):
        if k == 2:
            e(f"s_cmp_ge_u32 s{sW}, 2")
            e("s_cbranch_scc1 K1_RED_DONE")
        d = R + 16 * k
        for r in range(4): e(f"v_add_f32 v{d+r}, v{d+r}, v{d+4+r}")
        for r in range(4): e(f"v_add_f32 v{d+8+r}, v{d+8+r}, v{d+12+r}")
        for r in range(4): e(f"v_add_f32 v{d+r}, v{d+r}, v{d+8+r}")
        gelu(e, [d + r for r in range(4)], [d + 4 + r for r in range(4)], vC1, vC2)
        e(f"v_add_u32 v13, {4*k}, v12")
        e(f"v_add_u32 v6, s{sA}, v13")
        e(f"v_cmp_gt_u32 vcc, s{sBt}, v6")
        e(f"v_cvt_pk_bf16_f32 v{d+4}, v{d}, v{d+1}")
        e(f"v_cvt_pk_bf16_f32 v{d+5}, v{d+2}, v{d+3}")
        e(f"v_cndmask_b32 v{d+4}, 0, v{d+4}, vcc")
        e(f"v_cndmask_b32 v{d+5}, 0, v{d+5}, vcc")
        e("v_lshrrev_b32 v7, 1, v13")
        e("v_mul_u32_u24 v7, 96, v7")
        e("v_and_b32 v13, 1, v13")
        e("v_lshl_add_u32 v7, v13, 5, v7")
        e(f"v_lshl_add_u32 v7, v{vG_}, 3, v7")
        e(f"v_add_u32 v7, {HB}, v7")
        e(f"ds_write_b64 v7, v[{d+4}:{d+5}]")
    e("K1_RED_DONE:")
    e("s_waitcnt vmcnt(0)")
    for i in range(17):
        t, t2 = 200 + 2 * (i & 1), 201 + 2 * (i & 1)
        e(f"v_add_u32 v{t}, {256*i}, v0")
        e(f"v_mul_u32_u24 v{t2}, 29128, v{t}")
        e(f"v_lshrrev_b32 v{t2}, 22, v{t2}")
        e(f"v_lshlrev_b32 v{t2}, 7, v{t2}")
        e(f"v_lshl_add_u32 v{t}, v{t}, 4, v{t2}")
        e(f"ds_write_b128 v{t}, a[{4*i}:{4*i+3}] offset:{W2B}")
    vH, vAB0, vAB1, vC0, vC1b = 6, 7, 8, 12, 13
    e(f"""
    v_mul_u32_u24 v{vH}, 480, v{vM}
    v_lshl_add_u32 v{vH}, v{vG_}, 4, v{vH}
    v_add_u32 v{vH}, {HB}, v{vH}
    v_lshrrev_b32 v14, 1, v{vG_}
    v_mul_u32_u24 v14, 4864, v14
    v_and_b32 v15, 1, v{vG_}
    v_mul_u32_u24 v15, 2432, v15
    v_add_u32 v14, v14, v15
    v_mul_u32_u24 v15, 288, v{vRR}
    v_add_u32 v14, v14, v15
    v_lshl_add_u32 v{vC0}, v{vC4}, 3, v14
    v_add_u32 v{vC0}, 256, v{vC0}
    v_add_u32 v{vC1b}, 38912, v{vC0}
    v_lshl_add_u32 v{vAB0}, v{vC4}, 4, v14
    s_lshl_b32 s{sA}, s{sW}, 6
    v_add_u32 v{vAB0}, s{sA}, v{vAB0}
    v_add_u32 v{vAB1}, 38912, v{vAB0}
    """)
    e("s_waitcnt lgkmcnt(0)")
    e("s_barrier")
    W2F, HF, AC2 = 56, 152, 200
    def w2read(P, tile):
        d = W2F + (tile * 8 + P) * 4
        base = (P % 4) * 9728
        if tile < 2:
            va = vAB0 if P < 4 else vAB1
            off = base + tile * 8
        else:
            va = vC0 if P < 4 else vC1b
            off = base
        e(f"ds_read_b64_tr_b16 v[{d}:{d+1}], v{va} offset:{off}")
        e(f"ds_read_b64_tr_b16 v[{d+2}:{d+3}], v{va} offset:{off+1152}")
    HW = 16
    e(f"s_mul_i32 s{sA}, s{sW}, 96")
    e(f"v_add_u32 v15, s{sA}, v{vH}")
    for J in range(12): e(f"ds_read_b128 v[{HF+4*J}:{HF+4*J+3}], v{vH} offset:{J*96}")
    for P in range(8): e(f"ds_read_b128 v[{HW+4*P}:{HW+4*P+3}], v15 offset:{P*96}")
    for tile in range(3): w2read(0, tile)
    e(f"v_cmp_lt_u32 vcc, 31, v{vL}")
    e("s_nop 0")
    e("s_waitcnt lgkmcnt(0)")
    for tile in range(3):
        d = W2F + tile * 32
        for r in range(4): e(f"v_cndmask_b32 v{d+r}, 0, v{d+r}, vcc")
    for tile in range(3): w2read(1, tile)
    e("s_nop 0")
    def acc(tile, k): return AC2 + 4 * (tile * 5 + k) if tile < 2 else AC2 + 40 + 4 * k
    for P in range(8):
        if P + 2 < 8:
            for tile in range(3): w2read(P + 2, tile)
        if P >= 1:
            e(f"s_waitcnt lgkmcnt({6 * (min(P + 2, 7) - P)})")
        for tile in range(2):
            wf = W2F + (tile * 8 + P) * 4
            for jt in range(5):
                ac = acc(tile, jt)
                cin = "0" if P == 0 else f"v[{ac}:{ac+3}]"
                e(f"{MF32} v[{ac}:{ac+3}], v[{wf}:{wf+3}], v[{HF+4*(jt+P)}:{HF+4*(jt+P)+3}], {cin}")
        wf = W2F + (16 + P) * 4
        ac = acc(2, 0); cin = "0" if P == 0 else f"v[{ac}:{ac+3}]"
        e(f"{MF32} v[{ac}:{ac+3}], v[{wf}:{wf+3}], v[{HW+4*P}:{HW+4*P+3}], {cin}")
        ac = acc(2, 1); cin = "0" if P == 0 else f"v[{ac}:{ac+3}]"
        e(f"{MF32} v[{ac}:{ac+3}], v[{wf}:{wf+3}], v[{HF+4*(4+P)}:{HF+4*(4+P)+3}], {cin}")
    e(f"""
    s_mul_i32 s{sA}, s{sB}, 1008
    s_add_u32 s{sA}, s{sA}, s{sT0}
    s_mul_i32 s{sA}, s{sA}, 2592
    s_mul_i32 s{sBt}, s{sJ}, 288
    s_add_u32 s{sA}, s{sA}, s{sBt}
    v_mul_u32_u24 v14, 5, v{vM}
    v_mul_u32_u24 v15, {5*2592}, v{vM}
    v_add_u32 v15, s{sA}, v15
    v_lshl_add_u32 v6, v{vG_}, 4, v15
    s_lshl_b32 s{sBt}, s{sW}, 6
    v_add_u32 v6, s{sBt}, v6
    v_lshl_add_u32 v7, v{vG_}, 3, v15
    v_add_u32 v7, 256, v7
    v_mov_b32 v8, 0x80000000
    """)
    for jt in range(5):
        A, B_ = acc(0, jt), acc(1, jt)
        d = 56 + 4 * jt
        e(f"v_cvt_pk_bf16_f32 v{d}, v{A}, v{A+1}")
        e(f"v_cvt_pk_bf16_f32 v{d+1}, v{A+2}, v{A+3}")
        e(f"v_cvt_pk_bf16_f32 v{d+2}, v{B_}, v{B_+1}")
        e(f"v_cvt_pk_bf16_f32 v{d+3}, v{B_+2}, v{B_+3}")
        e(f"v_add_u32 v12, {jt}, v14")
        e(f"v_cmp_gt_u32 vcc, 72, v12")
        e(f"v_add_u32 v13, {jt*2592}, v6")
        e("s_nop 0")
        e(f"v_cndmask_b32 v{80+jt}, v8, v13, vcc")
        e(f"buffer_store_dwordx4 v[{d}:{d+3}], v{80+jt}, s[{SWS}:{SWS+3}], 0 offen")
    A = acc(2, 0)
    e(f"v_cvt_pk_bf16_f32 v86, v{A}, v{A+1}")
    e(f"v_cvt_pk_bf16_f32 v87, v{A+2}, v{A+3}")
    e(f"v_add_u32 v12, s{sW}, v14")
    e(f"v_cmp_gt_u32 vcc, 72, v12")
    e(f"s_mul_i32 s{sBt}, s{sW}, 2592")
    e(f"v_add_u32 v13, s{sBt}, v7")
    e("s_nop 0")
    e("v_cndmask_b32 v85, v8, v13, vcc")
    e(f"buffer_store_dwordx2 v[86:87], v85, s[{SWS}:{SWS+3}], 0 offen")
    e(f"s_cmp_lg_u32 s{sW}, 0")
    e("s_cbranch_scc1 K1_END")
    A = acc(2, 1)
    e(f"v_cvt_pk_bf16_f32 v90, v{A}, v{A+1}")
    e(f"v_cvt_pk_bf16_f32 v91, v{A+2}, v{A+3}")
    e("v_add_u32 v12, 4, v14")
    e("v_cmp_gt_u32 vcc, 72, v12")
    e(f"v_add_u32 v13, {4*2592}, v7")
    e("s_nop 0")
    e("v_cndmask_b32 v89, v8, v13, vcc")
    e(f"buffer_store_dwordx2 v[90:91], v89, s[{SWS}:{SWS+3}], 0 offen")
    e("s_endpgm")
    e("K1_AUX:")
    e("""
    s_load_dwordx2 s[40:41], s[0:1], 24
    s_load_dwordx2 s[42:43], s[0:1], 40
    v_lshrrev_b32 v6, 6, v0
    v_and_b32 v1, 63, v0
    """)
    e(f"v_readfirstlane_b32 s{sW}, v6")
    lane_parts(e, vL, vM, vG_, vRR, vC4)
    e("s_waitcnt lgkmcnt(0)")
    srd(e, 4, 40, 4608)
    srd(e, 8, 42, 41472)
    srd(e, SWS, 26, WS_SIZE)
    e(f"s_lshl_b32 s{sW1024}, s{sW}, 10")
    wimg_dma(e, 8, 0, 6, 7, 0, sW1024, sA)
    e(f"v_mul_u32_u24 v6, 288, v{vM}")
    e(f"v_lshl_add_u32 v7, v{vG_}, 3, v6")
    e(f"v_lshl_add_u32 v6, v{vG_}, 4, v6")
    GB = 16
    for kc in range(4): e(f"buffer_load_dwordx4 v[{GB+4*kc}:{GB+4*kc+3}], v6, s[4:7], 0 offen offset:{kc*64}")
    e(f"buffer_load_dwordx2 v[{GB+16}:{GB+17}], v7, s[4:7], 0 offen offset:256")
    small_gemm_addr(e, vG_, vRR, vC4, sW, sA, 12, 13, 14, 15, 0)
    e("s_waitcnt vmcnt(0)")
    e("s_barrier")
    D = 40
    small_gemm(e, 12, 13, 14, 15, GB, 64, D)
    e(f"""
    v_and_b32 v6, 7, v{vM}
    v_mul_u32_u24 v7, 576, v6
    v_lshrrev_b32 v6, 2, v6
    v_lshl_add_u32 v7, v6, 4, v7
    v_lshrrev_b32 v6, 3, v{vM}
    v_lshl_add_u32 v7, v6, 13, v7
    v_lshl_add_u32 v7, v{vG_}, 4, v7
    v_add_u32 v7, {WS_GE}, v7
    s_lshl_b32 s{sA}, s{sW}, 6
    v_add_u32 v8, s{sA}, v7
    v_mov_b32 v9, {f2h(TS)}
    s_nop 7
    """)
    for t in range(3):
        d = D + 4 * t
        round_scale(e, d, 9, 60)
    e(f"buffer_store_dwordx4 v[{D}:{D+3}], v8, s[{SWS}:{SWS+3}], 0 offen")
    e(f"buffer_store_dwordx4 v[{D+4}:{D+7}], v8, s[{SWS}:{SWS+3}], 0 offen offset:256")
    e(f"buffer_store_dwordx4 v[{D+8}:{D+11}], v7, s[{SWS}:{SWS+3}], 0 offen offset:512")
    e("K1_END:")
    e("s_endpgm")

def round_scale(e, d, vs, t):
    e(f"v_cvt_pk_bf16_f32 v{t}, v{d}, v{d+1}")
    e(f"v_cvt_pk_bf16_f32 v{t+1}, v{d+2}, v{d+3}")
    e(f"v_lshlrev_b32 v{d}, 16, v{t}")
    e(f"v_and_b32 v{d+1}, 0xffff0000, v{t}")
    e(f"v_lshlrev_b32 v{d+2}, 16, v{t+1}")
    e(f"v_and_b32 v{d+3}, 0xffff0000, v{t+1}")
    for r in range(4): e(f"v_mul_f32 v{d+r}, v{vs}, v{d+r}")

def small_gemm_addr(e, vG_, vRR, vC4, sW, sA, vA, vA8, vAh, vAh8, base):
    e(f"""
    v_mul_u32_u24 v{vA8}, 2432, v{vG_}
    v_mul_u32_u24 v{vAh8}, 288, v{vRR}
    v_lshl_add_u32 v{vAh8}, v{vC4}, 3, v{vAh8}
    v_add_u32 v{vA8}, v{vA8}, v{vAh8}
    v_lshrrev_b32 v{vA}, 1, v{vG_}
    v_mul_u32_u24 v{vA}, 2432, v{vA}
    v_add_u32 v{vAh8}, v{vAh8}, v{vA}
    v_and_b32 v{vA}, 1, v{vG_}
    v_mul_u32_u24 v{vA}, 1152, v{vA}
    v_add_u32 v{vAh8}, v{vAh8}, v{vA}
    v_add_u32 v{vAh8}, {16*2432 + base}, v{vAh8}
    v_add_u32 v{vA8}, {base}, v{vA8}
    s_lshl_b32 s{sA}, s{sW}, 5
    v_add_u32 v{vA}, s{sA}, v{vA8}
    v_add_u32 v{vAh}, s{sA}, v{vAh8}
    v_add_u32 v{vA8}, 256, v{vA8}
    v_add_u32 v{vAh8}, 256, v{vAh8}
    """)

def small_gemm(e, vA, vA8, vAh, vAh8, B, WF, D):
    for t in range(3):
        va, vh = (vA, vAh) if t < 2 else (vA8, vAh8)
        co = 128 if t == 1 else 0
        for kc in range(4):
            d = WF + t * 18 + kc * 4
            e(f"ds_read_b64_tr_b16 v[{d}:{d+1}], v{va} offset:{kc*9728 + co}")
            e(f"ds_read_b64_tr_b16 v[{d+2}:{d+3}], v{va} offset:{kc*9728 + co + 1152}")
        d = WF + t * 18 + 16
        e(f"ds_read_b64_tr_b16 v[{d}:{d+1}], v{vh} offset:{co}")
    e("s_waitcnt lgkmcnt(0)")
    for kc in range(4):
        for t in range(3):
            ac = D + 4 * t
            d = WF + t * 18 + kc * 4
            cin = "0" if kc == 0 else f"v[{ac}:{ac+3}]"
            e(f"{MF32} v[{ac}:{ac+3}], v[{d}:{d+3}], v[{B+4*kc}:{B+4*kc+3}], {cin}")
    e("s_nop 4")
    for t in range(3):
        ac = D + 4 * t
        d = WF + t * 18 + 16
        e(f"{MF16} v[{ac}:{ac+3}], v[{d}:{d+1}], v[{B+16}:{B+17}], v[{ac}:{ac+3}]")
```

```python
from common import *
from k1 import small_gemm_addr, small_gemm, round_scale

WFB, WOB, FB = 0, 45056, 90112
FEB = FB + 2304 + 256
GEB = FEB + 4608 + 256
K2_LDS = GEB + 8192

def gen_k2(e, name):
    SP, SWF, SWO, SO = 4, 8, 12, 16
    sB, sR, sW, sA, sBt, sW1024, sRow = 28, 29, 30, 31, 32, 33, 34
    e(f"{name}:")
    e("""
    s_load_dwordx2 s[20:21], s[0:1], 72
    s_load_dwordx2 s[22:23], s[0:1], 32
    s_load_dwordx4 s[24:27], s[0:1], 48
    s_cmp_ge_u32 s2, 250
    s_cbranch_scc1 K2_END
    """)
    e(f"""
    s_cmp_ge_u32 s2, 125
    s_cselect_b32 s{sB}, 1, 0
    s_mul_i32 s{sA}, s{sB}, 125
    s_sub_u32 s{sR}, s2, s{sA}
    s_lshl_b32 s{sR}, s{sR}, 3
    """)
    vL, vM, vG_, vRR, vC4 = 1, 2, 3, 4, 5
    e("v_lshrrev_b32 v6, 6, v0")
    e(f"v_and_b32 v{vL}, 63, v0")
    e(f"v_readfirstlane_b32 s{sW}, v6")
    lane_parts(e, vL, vM, vG_, vRR, vC4)
    e(f"""
    v_mul_u32_u24 v6, 3641, v0
    v_lshrrev_b32 v6, 16, v6
    v_mul_u32_u24 v7, 18, v6
    v_sub_u32 v7, v0, v7
    s_mul_i32 s{sA}, s{sB}, 1008
    s_add_u32 s{sA}, s{sA}, s{sR}
    s_mul_i32 s{sA}, s{sA}, 2592
    v_mul_u32_u24 v8, 2592, v6
    v_lshl_add_u32 v8, v7, 4, v8
    v_add_u32 v8, s{sA}, v8
    v_mov_b32 v9, 0x80000000
    v_cmp_gt_u32 vcc, 144, v0
    v_mul_u32_u24 v10, 288, v6
    v_lshl_add_u32 v10, v7, 4, v10
    v_add_u32 v10, {FB}, v10
    v_cndmask_b32 v8, v9, v8, vcc
    s_lshl_b32 s{sW1024}, s{sW}, 10
    s_waitcnt lgkmcnt(0)
    """)
    srd(e, SP, 20, WS_SIZE)
    PR = 16
    for js in range(9):
        e(f"buffer_load_dwordx4 v[{PR+4*js}:{PR+4*js+3}], v8, s[{SP}:{SP+3}], 0 offen offset:{js*288}")
    srd(e, SWF, 22, 41472)
    srd(e, SWO, 24, 41472)
    srd(e, SO, 26, 4608000)
    e(f"s_lshl_b32 s{sA}, s{sB}, 13")
    e(f"s_add_u32 s{sA}, s{sA}, {WS_GE}")
    for i in range(2):
        e(f"v_add_u32 v6, {256*i}, v0")
        e(f"v_lshlrev_b32 v6, 4, v6")
        e(f"s_add_u32 m0, s{sW1024}, {GEB + 4096*i}")
        e("s_nop 0")
        e(f"buffer_load_dwordx4 v6, s[{SP}:{SP+3}], s{sA} offen lds")
    wimg_dma(e, SWF, 0, 6, 7, WFB, sW1024, sA)
    wimg_dma(e, SWO, 0, 6, 7, WOB, sW1024, sA)
    small_gemm_addr(e, vG_, vRR, vC4, sW, sA, 12, 13, 14, 15, WFB)
    vC1, vC2 = 52, 53
    e(f"v_mov_b32 v{vC1}, {f2h(GC1)}")
    e(f"v_mov_b32 v{vC2}, {f2h(GC2)}")
    e("s_mov_b32 s36, 0x00003f80")
    e("s_mov_b32 s37, 0x3f800000")
    S = 56
    e("s_waitcnt vmcnt(24)")
    for q in range(4):
        e(f"v_lshlrev_b32 v{S+2*q}, 16, v{PR+q}")
        e(f"v_and_b32 v{S+2*q+1}, 0xffff0000, v{PR+q}")
    for js in range(1, 9):
        for q in range(4):
            e(f"v_dot2c_f32_bf16 v{S+2*q}, s36, v{PR+4*js+q}")
            e(f"v_dot2c_f32_bf16 v{S+2*q+1}, s37, v{PR+4*js+q}")
    e("s_nop 2")
    gelu(e, [S + i for i in range(8)], [S + 8 + i for i in range(8)], vC1, vC2)
    for q in range(4): e(f"v_cvt_pk_bf16_f32 v{S+8+q}, v{S+2*q}, v{S+2*q+1}")
    e("v_cmp_gt_u32 vcc, 144, v0")
    e("s_and_saveexec_b64 s[38:39], vcc")
    e("s_cbranch_execz K2_NOF")
    e(f"ds_write_b128 v10, v[{S+8}:{S+11}]")
    e("K2_NOF:")
    e("s_mov_b64 exec, s[38:39]")
    e("s_waitcnt vmcnt(11) lgkmcnt(0)")
    e("s_barrier")
    Bf, WFr, D = 16, 64, 40
    e(f"""
    v_and_b32 v6, 7, v{vM}
    v_mul_u32_u24 v7, 288, v6
    v_add_u32 v7, {FB}, v7
    v_lshl_add_u32 v8, v{vG_}, 4, v7
    v_lshl_add_u32 v9, v{vG_}, 3, v7
    """)
    for kc in range(4): e(f"ds_read_b128 v[{Bf+4*kc}:{Bf+4*kc+3}], v8 offset:{kc*64}")
    e(f"ds_read_b64 v[{Bf+16}:{Bf+17}], v9 offset:256")
    small_gemm(e, 12, 13, 14, 15, Bf, WFr, D)
    e(f"""
    v_mul_u32_u24 v7, 576, v6
    v_lshl_add_u32 v7, v{vG_}, 4, v7
    v_add_u32 v7, {FEB}, v7
    s_lshl_b32 s{sA}, s{sW}, 6
    v_add_u32 v8, s{sA}, v7
    v_mov_b32 v9, {f2h(TS)}
    s_nop 4
    """)
    for t in range(3): round_scale(e, D + 4 * t, 9, 60)
    e(f"ds_write_b128 v8, v[{D}:{D+3}]")
    e(f"ds_write_b128 v8, v[{D+4}:{D+7}] offset:256")
    e(f"ds_write_b128 v7, v[{D+8}:{D+11}] offset:512")
    vFE, vGE, vFEh, vGEh = 8, 9, 10, 11
    vO, vOh, vO8, vO8h = 12, 13, 14, 15
    e(f"""
    v_lshrrev_b32 v6, 3, v{vM}
    s_lshl_b32 s{sA}, s{sW}, 1
    v_add_u32 v6, s{sA}, v6
    v_mul_u32_u24 v6, 576, v6
    v_add_u32 v6, {FEB}, v6
    v_lshl_add_u32 v{vFEh}, v{vG_}, 4, v6
    v_lshl_add_u32 v{vFE}, v{vG_}, 5, v6
    v_and_b32 v6, 7, v{vM}
    v_mul_u32_u24 v7, 576, v6
    v_lshrrev_b32 v6, 2, v6
    v_lshl_add_u32 v7, v6, 4, v7
    v_add_u32 v7, {GEB}, v7
    v_lshl_add_u32 v{vGEh}, v{vG_}, 4, v7
    v_lshl_add_u32 v{vGE}, v{vG_}, 5, v7
    v_mul_u32_u24 v6, 288, v{vRR}
    v_mul_u32_u24 v7, 2432, v{vG_}
    v_add_u32 v7, v7, v6
    v_add_u32 v7, {WOB}, v7
    v_lshl_add_u32 v{vO}, v{vC4}, 4, v7
    v_lshl_add_u32 v{vO8}, v{vC4}, 3, v7
    v_add_u32 v{vO8}, 256, v{vO8}
    v_lshrrev_b32 v7, 1, v{vG_}
    v_mul_u32_u24 v7, 2432, v7
    v_add_u32 v6, v6, v7
    v_and_b32 v7, 1, v{vG_}
    v_mul_u32_u24 v7, 1152, v7
    v_add_u32 v6, v6, v7
    v_add_u32 v6, {WOB + 16*2432}, v6
    v_lshl_add_u32 v{vOh}, v{vC4}, 4, v6
    v_lshl_add_u32 v{vO8h}, v{vC4}, 3, v6
    v_add_u32 v{vO8h}, 256, v{vO8h}
    """)
    e("s_waitcnt vmcnt(0) lgkmcnt(0)")
    e("s_barrier")
    WO = 88
    FE, GE_, JB = 16, 32, 48
    def wo_read(tau, kc):
        d = WO + tau * 18 + kc * 4
        if tau < 8:
            pi, hb = tau >> 1, tau & 1
            co = pi * 64 + hb * 8
            va, vh = vO, vOh
        else:
            co = 0
            va, vh = vO8, vO8h
        if kc < 4:
            e(f"ds_read_b64_tr_b16 v[{d}:{d+1}], v{va} offset:{kc*9728 + co}")
            e(f"ds_read_b64_tr_b16 v[{d+2}:{d+3}], v{va} offset:{kc*9728 + co + 1152}")
            return 2
        e(f"ds_read_b64_tr_b16 v[{d}:{d+1}], v{vh} offset:{co}")
        return 1
    def je_read(kc):
        p = (kc & 1) * 8
        if kc < 4:
            e(f"ds_read_b128 v[{FE+p}:{FE+p+3}], v{vFE} offset:{kc*128}")
            e(f"ds_read_b128 v[{FE+p+4}:{FE+p+7}], v{vFE} offset:{kc*128 + 16}")
            e(f"ds_read_b128 v[{GE_+p}:{GE_+p+3}], v{vGE} offset:{kc*128}")
            e(f"ds_read_b128 v[{GE_+p+4}:{GE_+p+7}], v{vGE} offset:{kc*128 + 16}")
        else:
            e(f"ds_read_b128 v[{FE+p}:{FE+p+3}], v{vFEh} offset:512")
            e(f"ds_read_b128 v[{GE_+p}:{GE_+p+3}], v{vGEh} offset:512")
    def tanh_chunk(kc):
        p = (kc & 1) * 8
        n = 8 if kc < 4 else 4
        T = 66
        for i in range(n): e(f"v_add_f32 v{T+i}, v{FE+p+i}, v{GE_+p+i}")
        for i in range(n): e(f"v_exp_f32 v{T+i}, v{T+i}")
        for i in range(n): e(f"v_add_f32 v{T+i}, 1.0, v{T+i}")
        for i in range(n): e(f"v_rcp_f32 v{T+i}, v{T+i}")
        for i in range(n): e(f"v_fma_f32 v{T+i}, v{T+i}, -2.0, 1.0")
        for i in range(n // 2): e(f"v_cvt_pk_bf16_f32 v{JB+4*kc+i}, v{T+2*i}, v{T+2*i+1}")
    je_read(0)
    for kc in range(5):
        if kc + 1 < 5: je_read(kc + 1)
        nafter = (4 if kc + 1 < 4 else 2) if kc + 1 < 5 else 0
        e(f"s_waitcnt lgkmcnt({nafter})")
        cnt = 0
        for tau in range(9): cnt += wo_read(tau, kc)
        tanh_chunk(kc)
        e("s_waitcnt lgkmcnt(0)") if False else None
    e("s_waitcnt lgkmcnt(0)")
    AC = 16
    def acc(tau): return AC + 4 * tau if tau < 8 else 66
    e("s_nop 1")
    for kc in range(5):
        for tau in range(9):
            ac = acc(tau)
            d = WO + tau * 18 + kc * 4
            cin = "0" if kc == 0 else f"v[{ac}:{ac+3}]"
            if kc < 4: e(f"{MF32} v[{ac}:{ac+3}], v[{d}:{d+3}], v[{JB+4*kc}:{JB+4*kc+3}], {cin}")
            else: e(f"{MF16} v[{ac}:{ac+3}], v[{d}:{d+1}], v[{JB+16}:{JB+17}], {cin}")
    e(f"""
    s_mul_i32 s{sA}, s{sB}, 1000
    s_add_u32 s{sA}, s{sA}, s{sR}
    s_lshl_b32 s{sBt}, s{sW}, 1
    s_add_u32 s{sA}, s{sA}, s{sBt}
    s_mul_i32 s{sA}, s{sA}, 2304
    v_mul_u32_u24 v6, 288, v{vM}
    v_add_u32 v6, s{sA}, v6
    v_lshl_add_u32 v7, v{vG_}, 3, v6
    v_lshl_add_u32 v6, v{vG_}, 4, v6
    """)
    for pi in range(4):
        A, B_ = acc(2 * pi), acc(2 * pi + 1)
        d = 70 + 4 * pi
        e(f"v_cvt_pk_bf16_f32 v{d}, v{A}, v{A+1}")
        e(f"v_cvt_pk_bf16_f32 v{d+1}, v{A+2}, v{A+3}")
        e(f"v_cvt_pk_bf16_f32 v{d+2}, v{B_}, v{B_+1}")
        e(f"v_cvt_pk_bf16_f32 v{d+3}, v{B_+2}, v{B_+3}")
        e(f"buffer_store_dwordx4 v[{d}:{d+3}], v6, s[{SO}:{SO+3}], 0 offen offset:{pi*64}")
    A = acc(8)
    e(f"v_cvt_pk_bf16_f32 v86, v{A}, v{A+1}")
    e(f"v_cvt_pk_bf16_f32 v87, v{A+2}, v{A+3}")
    e(f"buffer_store_dwordx2 v[86:87], v7, s[{SO}:{SO+3}], 0 offen offset:256")
    e("K2_END:")
    e("s_endpgm")
```

```python
import sys
from common import *
from k1 import gen_k1
from k2 import gen_k2, K2_LDS
NAME = "standalone__seq2seq_rnn_t_joint__speech"
ref = open(f"cdna_kernels/{NAME}.s.ref").read().split("\n")
hdr = [l for l in ref if l.startswith("; Kernarg") or l.startswith(";   offset")]
out = "\n".join(hdr) + "\n"
K1, K2 = f"{NAME}_kernel", "rnnt_joint_kernel"
out += f"; @launch kernel={K1} grid=(256,1,1) block=(256,1,1) lds=163840\n"
out += f"; @launch kernel={K2} grid=(250,1,1) block=(256,1,1) lds={K2_LDS}\n"
out += '.amdgcn_target "amdgcn-amd-amdhsa--gfx950"\n.text\n'
def kern(name, fn):
    e = Em(); fn(e, name)
    return f".globl {name}\n.p2align 8\n.type {name},@function\n" + e.text()
out += kern(K1, gen_k1) + kern(K2, gen_k2)
def desc(name, nv, acc):
    return f""".amdhsa_kernel {name}
  .amdhsa_next_free_vgpr {nv}
  .amdhsa_next_free_sgpr 96
  .amdhsa_accum_offset {acc}
  .amdhsa_group_segment_fixed_size 0
  .amdhsa_kernarg_size 80
  .amdhsa_user_sgpr_count 2
  .amdhsa_user_sgpr_kernarg_segment_ptr 1
  .amdhsa_system_sgpr_workgroup_id_x 1
.end_amdhsa_kernel
"""
out += '.section .rodata,"a"\n.p2align 6\n' + desc(K1, 324, 256) + ".p2align 6\n" + desc(K2, 256, 256)
open(sys.argv[1] if len(sys.argv) > 1 else f"cdna_kernels/{NAME}.s", "w").write(out)
```

```python
class Em:
    def __init__(self):
        self.lines = []
    def __call__(self, s):
        for l in s.strip("\n").split("\n"):
            self.lines.append("    " + l.strip() if not l.strip().endswith(":") else l.strip())
    def text(self):
        return "\n".join(self.lines) + "\n"

def v(a, n=1):
    return f"v{a}" if n == 1 else f"v[{a}:{a+n-1}]"
def a_(a, n=1):
    return f"a{a}" if n == 1 else f"a[{a}:{a+n-1}]"
def s(a, n=1):
    return f"s{a}" if n == 1 else f"s[{a}:{a+n-1}]"

LOG2E = 1.4426950408889634
import struct
def f2h(x):
    return "0x%08x" % struct.unpack("<I", struct.pack("<f", x))[0]
GC1 = -2.0 * LOG2E * 0.7978845608028654
GC2 = GC1 * 0.044715
TS = 2.0 * LOG2E

def srd(e, d, base, size):
    e(f"s_mov_b32 s{d}, s{base}")
    e(f"s_and_b32 s{d+1}, s{base+1}, 0xffff")
    e(f"s_mov_b32 s{d+2}, {size}")
    e(f"s_mov_b32 s{d+3}, 0x20000")

def gelu(e, regs, tmp, c1, c2):
    n = len(regs)
    for i in range(n): e(f"v_mul_f32 v{tmp[i]}, v{regs[i]}, v{regs[i]}")
    for i in range(n): e(f"v_fma_f32 v{tmp[i]}, v{tmp[i]}, v{c2}, v{c1}")
    for i in range(n): e(f"v_mul_f32 v{tmp[i]}, v{tmp[i]}, v{regs[i]}")
    for i in range(n): e(f"v_exp_f32 v{tmp[i]}, v{tmp[i]}")
    if n < 2: e("s_nop 0")
    for i in range(n): e(f"v_add_f32 v{tmp[i]}, 1.0, v{tmp[i]}")
    for i in range(n): e(f"v_rcp_f32 v{tmp[i]}, v{tmp[i]}")
    if n < 2: e("s_nop 0")
    for i in range(n): e(f"v_mul_f32 v{regs[i]}, v{regs[i]}, v{tmp[i]}")

MF32 = "v_mfma_f32_16x16x32_bf16"
MF16 = "v_mfma_f32_16x16x16_bf16"

WS_P_BYTES = 2 * 1008 * 2592
WS_GE = 5242880
WS_SIZE = WS_GE + 2 * 8192

def lane_parts(e, vl, vm, vg, vrr, vc4):
    e(f"v_and_b32 v{vm}, 15, v{vl}")
    e(f"v_lshrrev_b32 v{vg}, 4, v{vl}")
    e(f"v_lshrrev_b32 v{vrr}, 2, v{vm}")
    e(f"v_and_b32 v{vc4}, 3, v{vl}")

def wimg_dma(e, srd_, vtid, vtmp, vtmp2, lds_base, sw, stmp, nins=11):
    for i in range(nins):
        e(f"v_add_u32 v{vtmp}, {256*i}, v{vtid}")
        e(f"v_mul_u32_u24 v{vtmp2}, 27595, v{vtmp}")
        e(f"v_lshrrev_b32 v{vtmp2}, 22, v{vtmp2}")
        e(f"v_lshlrev_b32 v{vtmp}, 4, v{vtmp}")
        e(f"v_lshlrev_b32 v{vtmp2}, 7, v{vtmp2}")
        e(f"v_sub_u32 v{vtmp}, v{vtmp}, v{vtmp2}")
        e(f"s_add_u32 m0, s{sw}, {lds_base + 4096*i}")
        e("s_nop 0")
        e(f"buffer_load_dwordx4 v{vtmp}, s[{srd_}:{srd_+3}], 0 offen lds")

import os
TSON = os.environ.get("TS") == "1"
if TSON: WS_SIZE = 8 << 20
TSB = 6 << 20
def ts(e, i):
    if TSON: e(f"s_memrealtime s[{60+2*i}:{61+2*i}]")
def ts_dump(e, n, base, srd_, sW):
    if not TSON: return
    lab = f"TSD_{base}"
    e("s_waitcnt vmcnt(0)")
    e(f"s_memrealtime s[{60+2*n}:{61+2*n}]")
    e(f"s_cmp_lg_u32 s{sW}, 0")
    e(f"s_cbranch_scc1 {lab}")
    e("s_waitcnt lgkmcnt(0)")
    e("s_mov_b64 exec, 1")
    e("s_lshl_b32 s59, s2, 6")
    e(f"s_add_u32 s59, s59, {base}")
    for i in range(n + 1):
        e(f"v_mov_b32 v1, s{60+2*i}")
        e(f"v_mov_b32 v2, {4*i}")
        e(f"buffer_store_dword v1, v2, s[{srd_}:{srd_+3}], s59 offen")
    e(f"{lab}:")

def ts_debug(e, srd_, sW, wg):
    if not TSON: return
    e(f"s_cmp_lg_u32 s2, {wg}")
    e("s_cbranch_scc1 TSDBG_END")
    e(f"s_cmp_lg_u32 s{sW}, 0")
    e("s_cbranch_scc1 TSDBG_END")
    e("s_load_dwordx2 s[40:41], s[0:1], 64")
    e("s_waitcnt lgkmcnt(0)")
    srd(e, 44, 40, 256)
    e("s_mov_b64 exec, 0xff")
    e("v_mbcnt_lo_u32_b32 v1, -1, 0")
    e("v_lshlrev_b32 v1, 2, v1")
    e(f"v_mov_b32 v2, {TSB + 64*wg}")
    e("v_add_u32 v3, v2, v1")
    e(f"buffer_load_dword v4, v3, s[{srd_}:{srd_+3}], 0 offen")
    e(f"buffer_load_dword v5, v2, s[{srd_}:{srd_+3}], 0 offen")
    e("s_waitcnt vmcnt(0)")
    e("v_sub_u32 v4, v4, v5")
    e("buffer_store_dword v4, v1, s[44:47], 0 offen")
    e("s_mov_b64 exec, 1")
    for i in range(8):
        e(f"v_sub_u32 v6, s{60+2*i}, v5")
        e(f"v_mov_b32 v7, {32+4*i}")
        e("buffer_store_dword v6, v7, s[44:47], 0 offen")
    e("TSDBG_END:")
```

```python
from common import *

RING = 102400
W2B = 4864
HB = 78848
NSLOT = 15

def gen_k1(e, name):
    SX, SW1, SW2, SWS = 4, 8, 12, 16
    sG, sJ, sB, sGG, sW, sT0 = 28, 29, 30, 31, 32, 33
    sA, sBt, sC = 34, 35, 36
    sRingW, sW1024 = 37, 38
    e(f"{name}:")
    ts(e, 0)
    e("""
    s_load_dwordx4 s[20:23], s[0:1], 0
    s_load_dwordx2 s[24:25], s[0:1], 16
    s_load_dwordx2 s[26:27], s[0:1], 72
    s_cmp_ge_u32 s2, 256
    s_cbranch_scc1 K1_END
    """)
    e(f"""
    s_and_b32 s{sA}, s2, 7
    s_lshr_b32 s{sBt}, s2, 3
    s_cmp_ge_u32 s{sBt}, 27
    s_cbranch_scc1 K1_TAILMAP
    s_mul_i32 s{sC}, s{sBt}, 57
    s_lshr_b32 s{sC}, s{sC}, 9
    s_mul_i32 s{sG}, s{sA}, 3
    s_add_u32 s{sG}, s{sG}, s{sC}
    s_mul_i32 s{sC}, s{sC}, 9
    s_sub_u32 s{sJ}, s{sBt}, s{sC}
    s_branch K1_MAPPED
    K1_TAILMAP:
    s_and_b32 s{sC}, s{sA}, 1
    s_mul_i32 s{sC}, s{sC}, 5
    s_add_u32 s{sC}, s{sC}, s{sBt}
    s_sub_u32 s{sJ}, s{sC}, 27
    s_lshr_b32 s{sG}, s{sA}, 1
    s_cmp_lt_u32 s{sJ}, 9
    s_cbranch_scc1 K1_TAILOK
    s_cmp_eq_u32 s{sG}, 0
    s_cbranch_scc1 K1_AUX
    s_branch K1_END
    K1_TAILOK:
    s_add_u32 s{sG}, s{sG}, 24
    K1_MAPPED:
    s_cmp_ge_u32 s{sG}, 14
    s_cselect_b32 s{sB}, 1, 0
    s_mul_i32 s{sC}, s{sB}, 14
    s_sub_u32 s{sGG}, s{sG}, s{sC}
    s_mul_i32 s{sT0}, s{sGG}, 72
    """)
    vL, vM, vG_, vRR, vC4 = 1, 2, 3, 4, 5
    e("v_lshrrev_b32 v6, 6, v0")
    e(f"v_and_b32 v{vL}, 63, v0")
    e(f"v_readfirstlane_b32 s{sW}, v6")
    lane_parts(e, vL, vM, vG_, vRR, vC4)
    e("s_waitcnt lgkmcnt(0)")
    e(f"""
    s_mul_i32 s{sC}, s{sB}, 1152000
    s_add_u32 s{SX}, s20, s{sC}
    s_addc_u32 s{SX+1}, s21, 0
    s_and_b32 s{SX+1}, s{SX+1}, 0xffff
    s_mov_b32 s{SX+2}, 1152000
    s_mov_b32 s{SX+3}, 0x20000
    """)
    srd(e, SW1, 22, 622080)
    srd(e, SW2, 24, 622080)
    srd(e, SWS, 26, WS_SIZE)
    e(f"s_lshl_b32 s{sW1024}, s{sW}, 10")
    e(f"""
    s_lshl_b32 s{sC}, s{sT0}, 1
    s_sub_u32 s{sC}, s{sC}, 12
    s_mul_i32 s{sC}, s{sC}, 576
    """)
    for i in range(25):
        t, t2 = 6 + 2 * (i & 1), 7 + 2 * (i & 1)
        e(f"v_add_u32 v{t}, {256*i}, v0")
        e(f"v_mul_u32_u24 v{t2}, 113360, v{t}")
        e(f"v_lshrrev_b32 v{t2}, 22, v{t2}")
        e(f"v_sub_u32 v{t}, v{t}, v{t2}")
        e(f"v_lshl_add_u32 v{t}, v{t}, 4, s{sC}")
        e(f"s_add_u32 m0, s{sW1024}, {4096*i}")
        e("s_nop 0")
        e(f"buffer_load_dwordx4 v{t}, s[{SX}:{SX+3}], 0 offen lds")
    vP0a, vP0b, vPn, vP8 = 10, 11, 12, 13
    vK, vT = 6, 7
    e(f"""
    v_lshrrev_b32 v{vT}, 1, v{vL}
    v_and_b32 v{vK}, 0x13, v{vT}
    v_and_b32 v8, 4, v{vT}
    v_lshlrev_b32 v8, 1, v8
    v_or_b32 v{vK}, v{vK}, v8
    v_and_b32 v8, 8, v{vT}
    v_lshrrev_b32 v8, 1, v8
    v_or_b32 v{vK}, v{vK}, v8
    v_and_b32 v8, 1, v{vL}
    v_lshlrev_b32 v8, 4, v8
    s_lshl_b32 s{sC}, s{sJ}, 5
    v_add_u32 v8, s{sC}, v8
    s_lshl_b32 s{sA}, s{sW}, 6
    v_add_u32 v9, s{sA}, v{vK}
    v_mul_u32_u24 v{vPn}, 288, v9
    v_add_u32 v{vPn}, v{vPn}, v8
    v_subrev_u32 v{vP0a}, {144*288}, v{vPn}
    v_subrev_u32 v{vP0b}, {112*288}, v{vPn}
    v_add_u32 v{vPn}, {144*288}, v{vPn}
    s_mul_i32 s{sA}, s{sW}, 576
    s_add_u32 s{sA}, s{sA}, 112
    v_add_u32 v9, s{sA}, v{vK}
    v_mul_u32_u24 v{vP8}, 288, v9
    v_add_u32 v{vP8}, v{vP8}, v8
    s_mul_i32 s{sRingW}, s{sW}, {NSLOT*1024}
    s_add_u32 s{sRingW}, s{sRingW}, {RING}
    """)
    units = [(0, P) for P in range(8)] + [(1, P) for P in range(8)] + [(2, 0), (2, 1)]
    def issue_unit(u):
        c, P = units[u]
        slot = u % NSLOT
        e(f"s_add_u32 m0, s{sRingW}, {slot*1024}")
        if c < 2 and P == 0:
            e("s_nop 0")
            e(f"buffer_load_dwordx4 v{vP0a if c == 0 else vP0b}, s[{SW1}:{SW1+3}], 0 offen lds")
        elif c < 2:
            e(f"s_mov_b32 s{sA}, {(288*(P-1) + 32*c) * 288}")
            e(f"buffer_load_dwordx4 v{vPn}, s[{SW1}:{SW1+3}], s{sA} offen lds")
        else:
            e(f"s_mov_b32 s{sA}, {P*288*288}")
            e(f"buffer_load_dwordx4 v{vP8}, s[{SW1}:{SW1+3}], s{sA} offen lds")
    for u in range(NSLOT): issue_unit(u)
    vXa, vX8, vWr = 14, 15, 9
    e(f"""
    v_mul_u32_u24 v{vXa}, 5920, v{vM}
    v_lshl_add_u32 v{vXa}, v{vG_}, 4, v{vXa}
    s_mul_i32 s{sA}, s{sW}, 1184
    s_add_u32 s{sA}, s{sA}, 512
    v_add_u32 v{vX8}, s{sA}, v{vXa}
    s_lshl_b32 s{sA}, s{sW}, 7
    v_add_u32 v{vXa}, s{sA}, v{vXa}
    v_lshrrev_b32 v6, 1, v{vG_}
    v_lshlrev_b32 v6, 4, v6
    v_and_b32 v7, 1, v{vG_}
    v_lshl_add_u32 v6, v7, 2, v6
    v_add_u32 v6, v6, v{vRR}
    v_lshlrev_b32 v6, 5, v6
    v_lshl_add_u32 v6, v{vC4}, 3, v6
    v_add_u32 v{vWr}, s{sRingW}, v6
    """)
    ACC, XA, XB, WF = 16, 56, 124, 192
    def w2_loads():
        e(f"s_mul_i32 s{sA}, s{sJ}, 4608")
        for i in range(17):
            t, t2 = 200 + 2 * (i & 1), 201 + 2 * (i & 1)
            e(f"v_add_u32 v{t}, {256*i}, v0")
            e(f"v_mul_u32_u24 v{t2}, 14564, v{t}")
            e(f"v_lshrrev_b32 v{t2}, 22, v{t2}")
            e(f"v_mul_u32_u24 v{t2}, {41472-4608}, v{t2}")
            e(f"v_lshl_add_u32 v{t}, v{t}, 4, v{t2}")
            e(f"buffer_load_dwordx4 a[{4*i}:{4*i+3}], v{t}, s[{SW2}:{SW2+3}], s{sA} offen")
    ts(e, 1)
    e("s_waitcnt vmcnt(15)")
    e("s_barrier")
    ts(e, 2)
    def xread(dst, J, c):
        if c < 2: e(f"ds_read_b128 v[{dst+4*J}:{dst+4*J+3}], v{vXa} offset:{J*592 + c*64}")
        else: e(f"ds_read_b128 v[{dst+4*J}:{dst+4*J+3}], v{vX8} offset:{J*592}")
    def wread(u):
        slot = u % NSLOT
        d = WF + 4 * (u & 1)
        e(f"ds_read_b64_tr_b16 v[{d}:{d+1}], v{vWr} offset:{slot*1024}")
        e(f"ds_read_b64_tr_b16 v[{d+2}:{d+3}], v{vWr} offset:{slot*1024+256}")
    def vm_for(u):
        if u <= 2: return 14
        if u <= 14: return 34 - u
        return 34 - u
    for J in range(17): xread(XA, J, 0)
    e("s_waitcnt vmcnt(14)")
    wread(0)
    pend = []
    for u, (c, P) in enumerate(units):
        e("s_waitcnt lgkmcnt(0)")
        if u + NSLOT < len(units):
            issue_unit(u + NSLOT)
            if u + NSLOT == len(units) - 1: w2_loads()
        if u + 1 < len(units):
            n = u + 1
            issued_after = min(len(units) - 1, u + NSLOT) - n
            if u + NSLOT >= len(units) - 1: issued_after += 17
            e(f"s_waitcnt vmcnt({issued_after})")
            wread(n)
        if c == 0:
            js = [j for j in range(17) if j * 8 // 17 == P]
            for J in js: xread(XB, J, 1)
        elif c == 1:
            js = [j for j in range(11) if j * 8 // 11 == P]
            for J in js: xread(XA, J, 2)
        X = XB if c == 1 else XA
        d = WF + 4 * (u & 1)
        for jt in range(10):
            cin = "0" if u == 0 else f"v[{ACC+4*jt}:{ACC+4*jt+3}]"
            e(f"{MF32} v[{ACC+4*jt}:{ACC+4*jt+3}], v[{d}:{d+3}], v[{X+4*(jt+P)}:{X+4*(jt+P)+3}], {cin}")
    ts(e, 3)
    e(f"v_lshlrev_b32 v6, 4, v{vL}")
    e(f"v_add_u32 v7, s{sRingW}, v6")
    e("s_nop 7")
    for jt in range(10):
        e(f"ds_write_b128 v7, v[{ACC+4*jt}:{ACC+4*jt+3}] offset:{jt*1024}")
    e(f"v_add_u32 v8, {RING}, v6")
    e(f"v_add_u32 v8, s{sW1024}, v8")
    e("s_waitcnt lgkmcnt(0)")
    e("s_barrier")
    R = 56
    for k in range(3):
        for src in range(4):
            d = R + 16 * k + 4 * src
            e(f"ds_read_b128 v[{d}:{d+3}], v8 offset:{src*NSLOT*1024 + k*4096}")
    vC1, vC2 = 10, 11
    e(f"v_mov_b32 v{vC1}, {f2h(GC1)}")
    e(f"v_mov_b32 v{vC2}, {f2h(GC2)}")
    e(f"v_mul_u32_u24 v12, 10, v{vM}")
    e(f"v_add_u32 v12, s{sW}, v12")
    e(f"s_lshl_b32 s{sA}, s{sT0}, 1")
    e(f"s_sub_u32 s{sA}, s{sA}, 8")
    e(f"s_movk_i32 s{sBt}, 2000")
    e("s_waitcnt lgkmcnt(0)")
    for k in range(3):
        if k == 2:
            e(f"s_cmp_ge_u32 s{sW}, 2")
            e("s_cbranch_scc1 K1_RED_DONE")
        d = R + 16 * k
        for r in range(4): e(f"v_add_f32 v{d+r}, v{d+r}, v{d+4+r}")
        for r in range(4): e(f"v_add_f32 v{d+8+r}, v{d+8+r}, v{d+12+r}")
        for r in range(4): e(f"v_add_f32 v{d+r}, v{d+r}, v{d+8+r}")
        gelu(e, [d + r for r in range(4)], [d + 4 + r for r in range(4)], vC1, vC2)
        e(f"v_add_u32 v13, {4*k}, v12")
        e(f"v_add_u32 v6, s{sA}, v13")
        e(f"v_cmp_gt_u32 vcc, s{sBt}, v6")
        e(f"v_cvt_pk_bf16_f32 v{d+4}, v{d}, v{d+1}")
        e(f"v_cvt_pk_bf16_f32 v{d+5}, v{d+2}, v{d+3}")
        e(f"v_cndmask_b32 v{d+4}, 0, v{d+4}, vcc")
        e(f"v_cndmask_b32 v{d+5}, 0, v{d+5}, vcc")
        e("v_lshrrev_b32 v7, 1, v13")
        e("v_mul_u32_u24 v7, 96, v7")
        e("v_and_b32 v13, 1, v13")
        e("v_lshl_add_u32 v7, v13, 5, v7")
        e(f"v_lshl_add_u32 v7, v{vG_}, 3, v7")
        e(f"v_add_u32 v7, {HB}, v7")
        e(f"ds_write_b64 v7, v[{d+4}:{d+5}]")
    e("K1_RED_DONE:")
    e("s_waitcnt vmcnt(0)")
    for i in range(17):
        t, t2 = 200 + 2 * (i & 1), 201 + 2 * (i & 1)
        e(f"v_add_u32 v{t}, {256*i}, v0")
        e(f"v_mul_u32_u24 v{t2}, 29128, v{t}")
        e(f"v_lshrrev_b32 v{t2}, 22, v{t2}")
        e(f"v_lshlrev_b32 v{t2}, 7, v{t2}")
        e(f"v_lshl_add_u32 v{t}, v{t}, 4, v{t2}")
        e(f"ds_write_b128 v{t}, a[{4*i}:{4*i+3}] offset:{W2B}")
    vH, vAB0, vAB1, vC0, vC1b = 6, 7, 8, 12, 13
    e(f"""
    v_mul_u32_u24 v{vH}, 480, v{vM}
    v_lshl_add_u32 v{vH}, v{vG_}, 4, v{vH}
    v_add_u32 v{vH}, {HB}, v{vH}
    v_lshrrev_b32 v14, 1, v{vG_}
    v_mul_u32_u24 v14, 4864, v14
    v_and_b32 v15, 1, v{vG_}
    v_mul_u32_u24 v15, 2432, v15
    v_add_u32 v14, v14, v15
    v_mul_u32_u24 v15, 288, v{vRR}
    v_add_u32 v14, v14, v15
    v_lshl_add_u32 v{vC0}, v{vC4}, 3, v14
    v_add_u32 v{vC0}, 256, v{vC0}
    v_add_u32 v{vC1b}, 38912, v{vC0}
    v_lshl_add_u32 v{vAB0}, v{vC4}, 4, v14
    s_lshl_b32 s{sA}, s{sW}, 6
    v_add_u32 v{vAB0}, s{sA}, v{vAB0}
    v_add_u32 v{vAB1}, 38912, v{vAB0}
    """)
    e("s_waitcnt lgkmcnt(0)")
    e("s_barrier")
    ts(e, 4)
    W2F, HF, AC2 = 56, 152, 200
    def w2read(P, tile):
        d = W2F + (tile * 8 + P) * 4
        base = (P % 4) * 9728
        if tile < 2:
            va = vAB0 if P < 4 else vAB1
            off = base + tile * 8
        else:
            va = vC0 if P < 4 else vC1b
            off = base
        e(f"ds_read_b64_tr_b16 v[{d}:{d+1}], v{va} offset:{off}")
        e(f"ds_read_b64_tr_b16 v[{d+2}:{d+3}], v{va} offset:{off+1152}")
    HW = 16
    e(f"s_mul_i32 s{sA}, s{sW}, 96")
    e(f"v_add_u32 v15, s{sA}, v{vH}")
    for J in range(12): e(f"ds_read_b128 v[{HF+4*J}:{HF+4*J+3}], v{vH} offset:{J*96}")
    for P in range(8): e(f"ds_read_b128 v[{HW+4*P}:{HW+4*P+3}], v15 offset:{P*96}")
    for tile in range(3): w2read(0, tile)
    e(f"v_cmp_lt_u32 vcc, 31, v{vL}")
    e("s_nop 0")
    e("s_waitcnt lgkmcnt(0)")
    for tile in range(3):
        d = W2F + tile * 32
        for r in range(4): e(f"v_cndmask_b32 v{d+r}, 0, v{d+r}, vcc")
    for tile in range(3): w2read(1, tile)
    e("s_nop 0")
    def acc(tile, k): return AC2 + 4 * (tile * 5 + k) if tile < 2 else AC2 + 40 + 4 * k
    for P in range(8):
        if P + 2 < 8:
            for tile in range(3): w2read(P + 2, tile)
        if P >= 1:
            e(f"s_waitcnt lgkmcnt({6 * (min(P + 2, 7) - P)})")
        for tile in range(2):
            wf = W2F + (tile * 8 + P) * 4
            for jt in range(5):
                ac = acc(tile, jt)
                cin = "0" if P == 0 else f"v[{ac}:{ac+3}]"
                e(f"{MF32} v[{ac}:{ac+3}], v[{wf}:{wf+3}], v[{HF+4*(jt+P)}:{HF+4*(jt+P)+3}], {cin}")
        wf = W2F + (16 + P) * 4
        ac = acc(2, 0); cin = "0" if P == 0 else f"v[{ac}:{ac+3}]"
        e(f"{MF32} v[{ac}:{ac+3}], v[{wf}:{wf+3}], v[{HW+4*P}:{HW+4*P+3}], {cin}")
        ac = acc(2, 1); cin = "0" if P == 0 else f"v[{ac}:{ac+3}]"
        e(f"{MF32} v[{ac}:{ac+3}], v[{wf}:{wf+3}], v[{HF+4*(4+P)}:{HF+4*(4+P)+3}], {cin}")
    ts(e, 5)
    e(f"""
    s_mul_i32 s{sA}, s{sB}, 1008
    s_add_u32 s{sA}, s{sA}, s{sT0}
    s_mul_i32 s{sA}, s{sA}, 2592
    s_mul_i32 s{sBt}, s{sJ}, 288
    s_add_u32 s{sA}, s{sA}, s{sBt}
    v_mul_u32_u24 v14, 5, v{vM}
    v_mul_u32_u24 v15, {5*2592}, v{vM}
    v_add_u32 v15, s{sA}, v15
    v_lshl_add_u32 v6, v{vG_}, 4, v15
    s_lshl_b32 s{sBt}, s{sW}, 6
    v_add_u32 v6, s{sBt}, v6
    v_lshl_add_u32 v7, v{vG_}, 3, v15
    v_add_u32 v7, 256, v7
    v_mov_b32 v8, 0x80000000
    """)
    for jt in range(5):
        A, B_ = acc(0, jt), acc(1, jt)
        d = 56 + 4 * jt
        e(f"v_cvt_pk_bf16_f32 v{d}, v{A}, v{A+1}")
        e(f"v_cvt_pk_bf16_f32 v{d+1}, v{A+2}, v{A+3}")
        e(f"v_cvt_pk_bf16_f32 v{d+2}, v{B_}, v{B_+1}")
        e(f"v_cvt_pk_bf16_f32 v{d+3}, v{B_+2}, v{B_+3}")
        e(f"v_add_u32 v12, {jt}, v14")
        e(f"v_cmp_gt_u32 vcc, 72, v12")
        e(f"v_add_u32 v13, {jt*2592}, v6")
        e("s_nop 0")
        e(f"v_cndmask_b32 v{80+jt}, v8, v13, vcc")
        e(f"buffer_store_dwordx4 v[{d}:{d+3}], v{80+jt}, s[{SWS}:{SWS+3}], 0 offen")
    A = acc(2, 0)
    e(f"v_cvt_pk_bf16_f32 v86, v{A}, v{A+1}")
    e(f"v_cvt_pk_bf16_f32 v87, v{A+2}, v{A+3}")
    e(f"v_add_u32 v12, s{sW}, v14")
    e(f"v_cmp_gt_u32 vcc, 72, v12")
    e(f"s_mul_i32 s{sBt}, s{sW}, 2592")
    e(f"v_add_u32 v13, s{sBt}, v7")
    e("s_nop 0")
    e("v_cndmask_b32 v85, v8, v13, vcc")
    e(f"buffer_store_dwordx2 v[86:87], v85, s[{SWS}:{SWS+3}], 0 offen")
    e(f"s_cmp_lg_u32 s{sW}, 0")
    e("s_cbranch_scc1 K1_END")
    A = acc(2, 1)
    e(f"v_cvt_pk_bf16_f32 v90, v{A}, v{A+1}")
    e(f"v_cvt_pk_bf16_f32 v91, v{A+2}, v{A+3}")
    e("v_add_u32 v12, 4, v14")
    e("v_cmp_gt_u32 vcc, 72, v12")
    e(f"v_add_u32 v13, {4*2592}, v7")
    e("s_nop 0")
    e("v_cndmask_b32 v89, v8, v13, vcc")
    e(f"buffer_store_dwordx2 v[90:91], v89, s[{SWS}:{SWS+3}], 0 offen")
    ts(e, 6)
    ts_dump(e, 7, TSB, SWS, sW)
    e("s_endpgm")
    e("K1_AUX:")
    e("""
    s_load_dwordx2 s[40:41], s[0:1], 24
    s_load_dwordx2 s[42:43], s[0:1], 40
    v_lshrrev_b32 v6, 6, v0
    v_and_b32 v1, 63, v0
    """)
    e(f"v_readfirstlane_b32 s{sW}, v6")
    lane_parts(e, vL, vM, vG_, vRR, vC4)
    e("s_waitcnt lgkmcnt(0)")
    srd(e, 4, 40, 4608)
    srd(e, 8, 42, 41472)
    srd(e, SWS, 26, WS_SIZE)
    e(f"s_lshl_b32 s{sW1024}, s{sW}, 10")
    wimg_dma(e, 8, 0, 6, 7, 0, sW1024, sA)
    e(f"v_mul_u32_u24 v6, 288, v{vM}")
    e(f"v_lshl_add_u32 v7, v{vG_}, 3, v6")
    e(f"v_lshl_add_u32 v6, v{vG_}, 4, v6")
    GB = 16
    for kc in range(4): e(f"buffer_load_dwordx4 v[{GB+4*kc}:{GB+4*kc+3}], v6, s[4:7], 0 offen offset:{kc*64}")
    e(f"buffer_load_dwordx2 v[{GB+16}:{GB+17}], v7, s[4:7], 0 offen offset:256")
    small_gemm_addr(e, vG_, vRR, vC4, sW, sA, 12, 13, 14, 15, 0)
    e("s_waitcnt vmcnt(0)")
    e("s_barrier")
    D = 40
    small_gemm(e, 12, 13, 14, 15, GB, 64, D)
    e(f"""
    v_and_b32 v6, 7, v{vM}
    v_mul_u32_u24 v7, 576, v6
    v_lshrrev_b32 v6, 2, v6
    v_lshl_add_u32 v7, v6, 4, v7
    v_lshrrev_b32 v6, 3, v{vM}
    v_lshl_add_u32 v7, v6, 13, v7
    v_lshl_add_u32 v7, v{vG_}, 4, v7
    v_add_u32 v7, {WS_GE}, v7
    s_lshl_b32 s{sA}, s{sW}, 6
    v_add_u32 v8, s{sA}, v7
    v_mov_b32 v9, {f2h(TS)}
    s_nop 7
    """)
    for t in range(3):
        d = D + 4 * t
        round_scale(e, d, 9, 60)
    e(f"buffer_store_dwordx4 v[{D}:{D+3}], v8, s[{SWS}:{SWS+3}], 0 offen")
    e(f"buffer_store_dwordx4 v[{D+4}:{D+7}], v8, s[{SWS}:{SWS+3}], 0 offen offset:256")
    e(f"buffer_store_dwordx4 v[{D+8}:{D+11}], v7, s[{SWS}:{SWS+3}], 0 offen offset:512")
    e("K1_END:")
    e("s_endpgm")

def round_scale(e, d, vs, t):
    e(f"v_cvt_pk_bf16_f32 v{t}, v{d}, v{d+1}")
    e(f"v_cvt_pk_bf16_f32 v{t+1}, v{d+2}, v{d+3}")
    e(f"v_lshlrev_b32 v{d}, 16, v{t}")
    e(f"v_and_b32 v{d+1}, 0xffff0000, v{t}")
    e(f"v_lshlrev_b32 v{d+2}, 16, v{t+1}")
    e(f"v_and_b32 v{d+3}, 0xffff0000, v{t+1}")
    for r in range(4): e(f"v_mul_f32 v{d+r}, v{vs}, v{d+r}")

def small_gemm_addr(e, vG_, vRR, vC4, sW, sA, vA, vA8, vAh, vAh8, base):
    e(f"""
    v_mul_u32_u24 v{vA8}, 2432, v{vG_}
    v_mul_u32_u24 v{vAh8}, 288, v{vRR}
    v_lshl_add_u32 v{vAh8}, v{vC4}, 3, v{vAh8}
    v_add_u32 v{vA8}, v{vA8}, v{vAh8}
    v_lshrrev_b32 v{vA}, 1, v{vG_}
    v_mul_u32_u24 v{vA}, 2432, v{vA}
    v_add_u32 v{vAh8}, v{vAh8}, v{vA}
    v_and_b32 v{vA}, 1, v{vG_}
    v_mul_u32_u24 v{vA}, 1152, v{vA}
    v_add_u32 v{vAh8}, v{vAh8}, v{vA}
    v_add_u32 v{vAh8}, {16*2432 + base}, v{vAh8}
    v_add_u32 v{vA8}, {base}, v{vA8}
    s_lshl_b32 s{sA}, s{sW}, 5
    v_add_u32 v{vA}, s{sA}, v{vA8}
    v_add_u32 v{vAh}, s{sA}, v{vAh8}
    v_add_u32 v{vA8}, 256, v{vA8}
    v_add_u32 v{vAh8}, 256, v{vAh8}
    """)

def small_gemm(e, vA, vA8, vAh, vAh8, B, WF, D):
    for t in range(3):
        va, vh = (vA, vAh) if t < 2 else (vA8, vAh8)
        co = 128 if t == 1 else 0
        for kc in range(4):
            d = WF + t * 18 + kc * 4
            e(f"ds_read_b64_tr_b16 v[{d}:{d+1}], v{va} offset:{kc*9728 + co}")
            e(f"ds_read_b64_tr_b16 v[{d+2}:{d+3}], v{va} offset:{kc*9728 + co + 1152}")
        d = WF + t * 18 + 16
        e(f"ds_read_b64_tr_b16 v[{d}:{d+1}], v{vh} offset:{co}")
    e("s_waitcnt lgkmcnt(0)")
    for kc in range(4):
        for t in range(3):
            ac = D + 4 * t
            d = WF + t * 18 + kc * 4
            cin = "0" if kc == 0 else f"v[{ac}:{ac+3}]"
            e(f"{MF32} v[{ac}:{ac+3}], v[{d}:{d+3}], v[{B+4*kc}:{B+4*kc+3}], {cin}")
    e("s_nop 4")
    for t in range(3):
        ac = D + 4 * t
        d = WF + t * 18 + 16
        e(f"{MF16} v[{ac}:{ac+3}], v[{d}:{d+1}], v[{B+16}:{B+17}], v[{ac}:{ac+3}]")
```

```python
from common import *
from k1 import small_gemm_addr, small_gemm, round_scale

WFB, WOB, FB = 0, 45056, 90112
FEB = FB + 2304 + 256
GEB = FEB + 4608 + 256
K2_LDS = GEB + 8192

def gen_k2(e, name):
    SP, SWF, SWO, SO = 4, 8, 12, 16
    sB, sR, sW, sA, sBt, sW1024, sRow = 28, 29, 30, 31, 32, 33, 34
    e(f"{name}:")
    ts(e, 0)
    e("""
    s_load_dwordx2 s[20:21], s[0:1], 72
    s_load_dwordx2 s[22:23], s[0:1], 32
    s_load_dwordx4 s[24:27], s[0:1], 48
    s_cmp_ge_u32 s2, 250
    s_cbranch_scc1 K2_END
    """)
    e(f"""
    s_cmp_ge_u32 s2, 125
    s_cselect_b32 s{sB}, 1, 0
    s_mul_i32 s{sA}, s{sB}, 125
    s_sub_u32 s{sR}, s2, s{sA}
    s_lshl_b32 s{sR}, s{sR}, 3
    """)
    vL, vM, vG_, vRR, vC4 = 1, 2, 3, 4, 5
    e("v_lshrrev_b32 v6, 6, v0")
    e(f"v_and_b32 v{vL}, 63, v0")
    e(f"v_readfirstlane_b32 s{sW}, v6")
    lane_parts(e, vL, vM, vG_, vRR, vC4)
    e(f"""
    v_mul_u32_u24 v6, 3641, v0
    v_lshrrev_b32 v6, 16, v6
    v_mul_u32_u24 v7, 18, v6
    v_sub_u32 v7, v0, v7
    s_mul_i32 s{sA}, s{sB}, 1008
    s_add_u32 s{sA}, s{sA}, s{sR}
    s_mul_i32 s{sA}, s{sA}, 2592
    v_mul_u32_u24 v8, 2592, v6
    v_lshl_add_u32 v8, v7, 4, v8
    v_add_u32 v8, s{sA}, v8
    v_mov_b32 v9, 0x80000000
    v_cmp_gt_u32 vcc, 144, v0
    v_mul_u32_u24 v10, 288, v6
    v_lshl_add_u32 v10, v7, 4, v10
    v_add_u32 v10, {FB}, v10
    v_cndmask_b32 v8, v9, v8, vcc
    s_lshl_b32 s{sW1024}, s{sW}, 10
    s_waitcnt lgkmcnt(0)
    """)
    srd(e, SP, 20, WS_SIZE)
    PR = 16
    for js in range(9):
        e(f"buffer_load_dwordx4 v[{PR+4*js}:{PR+4*js+3}], v8, s[{SP}:{SP+3}], 0 offen offset:{js*288}")
    srd(e, SWF, 22, 41472)
    srd(e, SWO, 24, 41472)
    srd(e, SO, 26, 4608000)
    e(f"s_lshl_b32 s{sA}, s{sB}, 13")
    e(f"s_add_u32 s{sA}, s{sA}, {WS_GE}")
    for i in range(2):
        e(f"v_add_u32 v6, {256*i}, v0")
        e(f"v_lshlrev_b32 v6, 4, v6")
        e(f"s_add_u32 m0, s{sW1024}, {GEB + 4096*i}")
        e("s_nop 0")
        e(f"buffer_load_dwordx4 v6, s[{SP}:{SP+3}], s{sA} offen lds")
    wimg_dma(e, SWF, 0, 6, 7, WFB, sW1024, sA)
    wimg_dma(e, SWO, 0, 6, 7, WOB, sW1024, sA)
    small_gemm_addr(e, vG_, vRR, vC4, sW, sA, 12, 13, 14, 15, WFB)
    vC1, vC2 = 52, 53
    e(f"v_mov_b32 v{vC1}, {f2h(GC1)}")
    e(f"v_mov_b32 v{vC2}, {f2h(GC2)}")
    e("s_mov_b32 s36, 0x00003f80")
    e("s_mov_b32 s37, 0x3f800000")
    S = 56
    e("s_waitcnt vmcnt(24)")
    ts(e, 1)
    for q in range(4):
        e(f"v_lshlrev_b32 v{S+2*q}, 16, v{PR+q}")
        e(f"v_and_b32 v{S+2*q+1}, 0xffff0000, v{PR+q}")
    for js in range(1, 9):
        for q in range(4):
            e(f"v_dot2c_f32_bf16 v{S+2*q}, s36, v{PR+4*js+q}")
            e(f"v_dot2c_f32_bf16 v{S+2*q+1}, s37, v{PR+4*js+q}")
    e("s_nop 2")
    gelu(e, [S + i for i in range(8)], [S + 8 + i for i in range(8)], vC1, vC2)
    for q in range(4): e(f"v_cvt_pk_bf16_f32 v{S+8+q}, v{S+2*q}, v{S+2*q+1}")
    e("v_cmp_gt_u32 vcc, 144, v0")
    e("s_and_saveexec_b64 s[38:39], vcc")
    e("s_cbranch_execz K2_NOF")
    e(f"ds_write_b128 v10, v[{S+8}:{S+11}]")
    e("K2_NOF:")
    e("s_mov_b64 exec, s[38:39]")
    e("s_waitcnt vmcnt(11) lgkmcnt(0)")
    e("s_barrier")
    ts(e, 2)
    Bf, WFr, D = 16, 64, 40
    e(f"""
    v_and_b32 v6, 7, v{vM}
    v_mul_u32_u24 v7, 288, v6
    v_add_u32 v7, {FB}, v7
    v_lshl_add_u32 v8, v{vG_}, 4, v7
    v_lshl_add_u32 v9, v{vG_}, 3, v7
    """)
    for kc in range(4): e(f"ds_read_b128 v[{Bf+4*kc}:{Bf+4*kc+3}], v8 offset:{kc*64}")
    e(f"ds_read_b64 v[{Bf+16}:{Bf+17}], v9 offset:256")
    small_gemm(e, 12, 13, 14, 15, Bf, WFr, D)
    e(f"""
    v_mul_u32_u24 v7, 576, v6
    v_lshl_add_u32 v7, v{vG_}, 4, v7
    v_add_u32 v7, {FEB}, v7
    s_lshl_b32 s{sA}, s{sW}, 6
    v_add_u32 v8, s{sA}, v7
    v_mov_b32 v9, {f2h(TS)}
    s_nop 4
    """)
    for t in range(3): round_scale(e, D + 4 * t, 9, 60)
    e(f"ds_write_b128 v8, v[{D}:{D+3}]")
    e(f"ds_write_b128 v8, v[{D+4}:{D+7}] offset:256")
    e(f"ds_write_b128 v7, v[{D+8}:{D+11}] offset:512")
    vFE, vGE, vFEh, vGEh = 8, 9, 10, 11
    vO, vOh, vO8, vO8h = 12, 13, 14, 15
    e(f"""
    v_lshrrev_b32 v6, 3, v{vM}
    s_lshl_b32 s{sA}, s{sW}, 1
    v_add_u32 v6, s{sA}, v6
    v_mul_u32_u24 v6, 576, v6
    v_add_u32 v6, {FEB}, v6
    v_lshl_add_u32 v{vFEh}, v{vG_}, 4, v6
    v_lshl_add_u32 v{vFE}, v{vG_}, 5, v6
    v_and_b32 v6, 7, v{vM}
    v_mul_u32_u24 v7, 576, v6
    v_lshrrev_b32 v6, 2, v6
    v_lshl_add_u32 v7, v6, 4, v7
    v_add_u32 v7, {GEB}, v7
    v_lshl_add_u32 v{vGEh}, v{vG_}, 4, v7
    v_lshl_add_u32 v{vGE}, v{vG_}, 5, v7
    v_mul_u32_u24 v6, 288, v{vRR}
    v_mul_u32_u24 v7, 2432, v{vG_}
    v_add_u32 v7, v7, v6
    v_add_u32 v7, {WOB}, v7
    v_lshl_add_u32 v{vO}, v{vC4}, 4, v7
    v_lshl_add_u32 v{vO8}, v{vC4}, 3, v7
    v_add_u32 v{vO8}, 256, v{vO8}
    v_lshrrev_b32 v7, 1, v{vG_}
    v_mul_u32_u24 v7, 2432, v7
    v_add_u32 v6, v6, v7
    v_and_b32 v7, 1, v{vG_}
    v_mul_u32_u24 v7, 1152, v7
    v_add_u32 v6, v6, v7
    v_add_u32 v6, {WOB + 16*2432}, v6
    v_lshl_add_u32 v{vOh}, v{vC4}, 4, v6
    v_lshl_add_u32 v{vO8h}, v{vC4}, 3, v6
    v_add_u32 v{vO8h}, 256, v{vO8h}
    """)
    e("s_waitcnt vmcnt(0) lgkmcnt(0)")
    e("s_barrier")
    ts(e, 3)
    WO = 88
    FE, GE_, JB = 16, 32, 48
    def wo_read(tau, kc):
        d = WO + tau * 18 + kc * 4
        if tau < 8:
            pi, hb = tau >> 1, tau & 1
            co = pi * 64 + hb * 8
            va, vh = vO, vOh
        else:
            co = 0
            va, vh = vO8, vO8h
        if kc < 4:
            e(f"ds_read_b64_tr_b16 v[{d}:{d+1}], v{va} offset:{kc*9728 + co}")
            e(f"ds_read_b64_tr_b16 v[{d+2}:{d+3}], v{va} offset:{kc*9728 + co + 1152}")
            return 2
        e(f"ds_read_b64_tr_b16 v[{d}:{d+1}], v{vh} offset:{co}")
        return 1
    def je_read(kc):
        p = (kc & 1) * 8
        if kc < 4:
            e(f"ds_read_b128 v[{FE+p}:{FE+p+3}], v{vFE} offset:{kc*128}")
            e(f"ds_read_b128 v[{FE+p+4}:{FE+p+7}], v{vFE} offset:{kc*128 + 16}")
            e(f"ds_read_b128 v[{GE_+p}:{GE_+p+3}], v{vGE} offset:{kc*128}")
            e(f"ds_read_b128 v[{GE_+p+4}:{GE_+p+7}], v{vGE} offset:{kc*128 + 16}")
        else:
            e(f"ds_read_b128 v[{FE+p}:{FE+p+3}], v{vFEh} offset:512")
            e(f"ds_read_b128 v[{GE_+p}:{GE_+p+3}], v{vGEh} offset:512")
    def tanh_chunk(kc):
        p = (kc & 1) * 8
        n = 8 if kc < 4 else 4
        T = 66
        for i in range(n): e(f"v_add_f32 v{T+i}, v{FE+p+i}, v{GE_+p+i}")
        for i in range(n): e(f"v_exp_f32 v{T+i}, v{T+i}")
        for i in range(n): e(f"v_add_f32 v{T+i}, 1.0, v{T+i}")
        for i in range(n): e(f"v_rcp_f32 v{T+i}, v{T+i}")
        for i in range(n): e(f"v_fma_f32 v{T+i}, v{T+i}, -2.0, 1.0")
        for i in range(n // 2): e(f"v_cvt_pk_bf16_f32 v{JB+4*kc+i}, v{T+2*i}, v{T+2*i+1}")
    je_read(0)
    for kc in range(5):
        if kc + 1 < 5: je_read(kc + 1)
        nafter = (4 if kc + 1 < 4 else 2) if kc + 1 < 5 else 0
        e(f"s_waitcnt lgkmcnt({nafter})")
        cnt = 0
        for tau in range(9): cnt += wo_read(tau, kc)
        tanh_chunk(kc)
        e("s_waitcnt lgkmcnt(0)") if False else None
    e("s_waitcnt lgkmcnt(0)")
    ts(e, 4)
    AC = 16
    def acc(tau): return AC + 4 * tau if tau < 8 else 66
    e("s_nop 1")
    for kc in range(5):
        for tau in range(9):
            ac = acc(tau)
            d = WO + tau * 18 + kc * 4
            cin = "0" if kc == 0 else f"v[{ac}:{ac+3}]"
            if kc < 4: e(f"{MF32} v[{ac}:{ac+3}], v[{d}:{d+3}], v[{JB+4*kc}:{JB+4*kc+3}], {cin}")
            else: e(f"{MF16} v[{ac}:{ac+3}], v[{d}:{d+1}], v[{JB+16}:{JB+17}], {cin}")
    ts(e, 5)
    e(f"""
    s_mul_i32 s{sA}, s{sB}, 1000
    s_add_u32 s{sA}, s{sA}, s{sR}
    s_lshl_b32 s{sBt}, s{sW}, 1
    s_add_u32 s{sA}, s{sA}, s{sBt}
    s_mul_i32 s{sA}, s{sA}, 2304
    v_mul_u32_u24 v6, 288, v{vM}
    v_add_u32 v6, s{sA}, v6
    v_lshl_add_u32 v7, v{vG_}, 3, v6
    v_lshl_add_u32 v6, v{vG_}, 4, v6
    """)
    for pi in range(4):
        A, B_ = acc(2 * pi), acc(2 * pi + 1)
        d = 70 + 4 * pi
        e(f"v_cvt_pk_bf16_f32 v{d}, v{A}, v{A+1}")
        e(f"v_cvt_pk_bf16_f32 v{d+1}, v{A+2}, v{A+3}")
        e(f"v_cvt_pk_bf16_f32 v{d+2}, v{B_}, v{B_+1}")
        e(f"v_cvt_pk_bf16_f32 v{d+3}, v{B_+2}, v{B_+3}")
        e(f"buffer_store_dwordx4 v[{d}:{d+3}], v6, s[{SO}:{SO+3}], 0 offen offset:{pi*64}")
    A = acc(8)
    e(f"v_cvt_pk_bf16_f32 v86, v{A}, v{A+1}")
    e(f"v_cvt_pk_bf16_f32 v87, v{A+2}, v{A+3}")
    e(f"buffer_store_dwordx2 v[86:87], v7, s[{SO}:{SO+3}], 0 offen offset:256")
    ts(e, 6)
    ts_dump(e, 7, TSB + 32768, SP, sW)
    ts_debug(e, SP, sW, int(os.environ.get("TSWG", "100")))
    e("K2_END:")
    e("s_endpgm")
```

```python
class Em:
    def __init__(self):
        self.lines = []
    def __call__(self, s):
        for l in s.strip("\n").split("\n"):
            self.lines.append("    " + l.strip() if not l.strip().endswith(":") else l.strip())
    def text(self):
        return "\n".join(self.lines) + "\n"

def v(a, n=1):
    return f"v{a}" if n == 1 else f"v[{a}:{a+n-1}]"
def a_(a, n=1):
    return f"a{a}" if n == 1 else f"a[{a}:{a+n-1}]"
def s(a, n=1):
    return f"s{a}" if n == 1 else f"s[{a}:{a+n-1}]"

LOG2E = 1.4426950408889634
import struct
def f2h(x):
    return "0x%08x" % struct.unpack("<I", struct.pack("<f", x))[0]
GC1 = -2.0 * LOG2E * 0.7978845608028654
GC2 = GC1 * 0.044715
TS = 2.0 * LOG2E

def srd(e, d, base, size):
    e(f"s_mov_b32 s{d}, s{base}")
    e(f"s_and_b32 s{d+1}, s{base+1}, 0xffff")
    e(f"s_mov_b32 s{d+2}, {size}")
    e(f"s_mov_b32 s{d+3}, 0x20000")

def gelu(e, regs, tmp, c1, c2):
    n = len(regs)
    for i in range(n): e(f"v_mul_f32 v{tmp[i]}, v{regs[i]}, v{regs[i]}")
    for i in range(n): e(f"v_fma_f32 v{tmp[i]}, v{tmp[i]}, v{c2}, v{c1}")
    for i in range(n): e(f"v_mul_f32 v{tmp[i]}, v{tmp[i]}, v{regs[i]}")
    for i in range(n): e(f"v_exp_f32 v{tmp[i]}, v{tmp[i]}")
    if n < 2: e("s_nop 0")
    for i in range(n): e(f"v_add_f32 v{tmp[i]}, 1.0, v{tmp[i]}")
    for i in range(n): e(f"v_rcp_f32 v{tmp[i]}, v{tmp[i]}")
    if n < 2: e("s_nop 0")
    for i in range(n): e(f"v_mul_f32 v{regs[i]}, v{regs[i]}, v{tmp[i]}")

MF32 = "v_mfma_f32_16x16x32_bf16"
MF16 = "v_mfma_f32_16x16x16_bf16"

WS_P_BYTES = 2 * 1008 * 2592
WS_GE = 5242880
WS_SIZE = WS_GE + 2 * 8192

def lane_parts(e, vl, vm, vg, vrr, vc4):
    e(f"v_and_b32 v{vm}, 15, v{vl}")
    e(f"v_lshrrev_b32 v{vg}, 4, v{vl}")
    e(f"v_lshrrev_b32 v{vrr}, 2, v{vm}")
    e(f"v_and_b32 v{vc4}, 3, v{vl}")

def wimg_dma(e, srd_, vtid, vtmp, vtmp2, lds_base, sw, stmp, nins=11):
    for i in range(nins):
        e(f"v_add_u32 v{vtmp}, {256*i}, v{vtid}")
        e(f"v_mul_u32_u24 v{vtmp2}, 27595, v{vtmp}")
        e(f"v_lshrrev_b32 v{vtmp2}, 22, v{vtmp2}")
        e(f"v_lshlrev_b32 v{vtmp}, 4, v{vtmp}")
        e(f"v_lshlrev_b32 v{vtmp2}, 7, v{vtmp2}")
        e(f"v_sub_u32 v{vtmp}, v{vtmp}, v{vtmp2}")
        e(f"s_add_u32 m0, s{sw}, {lds_base + 4096*i}")
        e("s_nop 0")
        e(f"buffer_load_dwordx4 v{vtmp}, s[{srd_}:{srd_+3}], 0 offen lds")

import os
TSON = os.environ.get("TS") == "1"
if TSON: WS_SIZE = 8 << 20
TSB = 6 << 20
def ts(e, i):
    if TSON: e(f"s_memrealtime s[{60+2*i}:{61+2*i}]")
    if TSON and i == 0: e("s_memtime s[76:77]")
def ts_dump(e, n, base, srd_, sW):
    if not TSON: return
    lab = f"TSD_{base}"
    e("s_waitcnt vmcnt(0)")
    e(f"s_memrealtime s[{60+2*n}:{61+2*n}]")
    e("s_memtime s[78:79]")
    e(f"s_cmp_lg_u32 s{sW}, 0")
    e(f"s_cbranch_scc1 {lab}")
    e("s_waitcnt lgkmcnt(0)")
    e("s_mov_b64 exec, 1")
    e("s_lshl_b32 s59, s2, 6")
    e(f"s_add_u32 s59, s59, {base}")
    for i in range(n + 3):
        e(f"v_mov_b32 v1, s{60+2*i}")
        e(f"v_mov_b32 v2, {4*i}")
        e(f"buffer_store_dword v1, v2, s[{srd_}:{srd_+3}], s59 offen")
    e(f"{lab}:")

def ts_debug(e, srd_, sW, wg):
    if not TSON: return
    e(f"s_cmp_lg_u32 s2, {wg}")
    e("s_cbranch_scc1 TSDBG_END")
    e(f"s_cmp_lg_u32 s{sW}, 0")
    e("s_cbranch_scc1 TSDBG_END")
    e("s_load_dwordx2 s[40:41], s[0:1], 64")
    e("s_waitcnt lgkmcnt(0)")
    srd(e, 44, 40, 256)
    e("s_mov_b64 exec, 0xff")
    e("v_mbcnt_lo_u32_b32 v1, -1, 0")
    e("v_lshlrev_b32 v1, 2, v1")
    e(f"v_mov_b32 v2, {TSB + 64*wg}")
    e("v_add_u32 v3, v2, v1")
    e(f"buffer_load_dword v4, v3, s[{srd_}:{srd_+3}], 0 offen")
    e(f"buffer_load_dword v5, v2, s[{srd_}:{srd_+3}], 0 offen")
    e("s_waitcnt vmcnt(0)")
    e("v_sub_u32 v4, v4, v5")
    e("buffer_store_dword v4, v1, s[44:47], 0 offen")
    e("s_mov_b64 exec, 1")
    for i in range(8):
        e(f"v_sub_u32 v6, s{60+2*i}, v5")
        e(f"v_mov_b32 v7, {32+4*i}")
        e("buffer_store_dword v6, v7, s[44:47], 0 offen")
    e("TSDBG_END:")

_tsmap = dict((kv.split(":")[0], int(kv.split(":")[1])) for kv in os.environ.get("TSMAP", "").split(",") if kv)
_ts0 = ts
def tsn(e, name):
    if os.environ.get("EXITAT") == name: e("s_waitcnt vmcnt(0) lgkmcnt(0)"); e("s_endpgm")
    if name in _tsmap: e(f"s_memrealtime s[{60+2*_tsmap[name]}:{61+2*_tsmap[name]}]")
def ts(e, i, k="k1"):
    if _tsmap and i != 0 and k == "k1": return
    _ts0(e, i)
```

```python
from common import *

RING = 102400
W2B = 4864
HB = 78848
NSLOT = 15

def gen_k1(e, name):
    SX, SW1, SW2, SWS = 4, 8, 12, 16
    sG, sJ, sB, sGG, sW, sT0 = 28, 29, 30, 31, 32, 33
    sA, sBt, sC = 34, 35, 36
    sRingW, sW1024 = 37, 38
    e(f"{name}:")
    ts(e, 0)
    e("""
    s_load_dwordx4 s[20:23], s[0:1], 0
    s_load_dwordx2 s[24:25], s[0:1], 16
    s_load_dwordx2 s[26:27], s[0:1], 72
    s_cmp_ge_u32 s2, 256
    s_cbranch_scc1 K1_END
    """)
    e(f"""
    s_and_b32 s{sA}, s2, 7
    s_lshr_b32 s{sBt}, s2, 3
    s_cmp_ge_u32 s{sBt}, 27
    s_cbranch_scc1 K1_TAILMAP
    s_mul_i32 s{sC}, s{sBt}, 57
    s_lshr_b32 s{sC}, s{sC}, 9
    s_mul_i32 s{sG}, s{sA}, 3
    s_add_u32 s{sG}, s{sG}, s{sC}
    s_mul_i32 s{sC}, s{sC}, 9
    s_sub_u32 s{sJ}, s{sBt}, s{sC}
    s_branch K1_MAPPED
    K1_TAILMAP:
    s_and_b32 s{sC}, s{sA}, 1
    s_mul_i32 s{sC}, s{sC}, 5
    s_add_u32 s{sC}, s{sC}, s{sBt}
    s_sub_u32 s{sJ}, s{sC}, 27
    s_lshr_b32 s{sG}, s{sA}, 1
    s_cmp_lt_u32 s{sJ}, 9
    s_cbranch_scc1 K1_TAILOK
    s_cmp_eq_u32 s{sG}, 0
    s_cbranch_scc1 K1_AUX
    s_branch K1_END
    K1_TAILOK:
    s_add_u32 s{sG}, s{sG}, 24
    K1_MAPPED:
    s_cmp_ge_u32 s{sG}, 14
    s_cselect_b32 s{sB}, 1, 0
    s_mul_i32 s{sC}, s{sB}, 14
    s_sub_u32 s{sGG}, s{sG}, s{sC}
    s_mul_i32 s{sT0}, s{sGG}, 72
    """)
    vL, vM, vG_, vRR, vC4 = 1, 2, 3, 4, 5
    e("v_lshrrev_b32 v6, 6, v0")
    e(f"v_and_b32 v{vL}, 63, v0")
    e(f"v_readfirstlane_b32 s{sW}, v6")
    lane_parts(e, vL, vM, vG_, vRR, vC4)
    e("s_waitcnt lgkmcnt(0)")
    e(f"""
    s_mul_i32 s{sC}, s{sB}, 1152000
    s_add_u32 s{SX}, s20, s{sC}
    s_addc_u32 s{SX+1}, s21, 0
    s_and_b32 s{SX+1}, s{SX+1}, 0xffff
    s_mov_b32 s{SX+2}, 1152000
    s_mov_b32 s{SX+3}, 0x20000
    """)
    srd(e, SW1, 22, 622080)
    srd(e, SW2, 24, 622080)
    srd(e, SWS, 26, WS_SIZE)
    e(f"s_lshl_b32 s{sW1024}, s{sW}, 10")
    e(f"""
    s_lshl_b32 s{sC}, s{sT0}, 1
    s_sub_u32 s{sC}, s{sC}, 12
    s_mul_i32 s{sC}, s{sC}, 576
    """)
    for i in range(25):
        t, t2 = 6 + 2 * (i & 1), 7 + 2 * (i & 1)
        e(f"v_add_u32 v{t}, {256*i}, v0")
        e(f"v_mul_u32_u24 v{t2}, 113360, v{t}")
        e(f"v_lshrrev_b32 v{t2}, 22, v{t2}")
        e(f"v_sub_u32 v{t}, v{t}, v{t2}")
        e(f"v_lshl_add_u32 v{t}, v{t}, 4, s{sC}")
        e(f"s_add_u32 m0, s{sW1024}, {4096*i}")
        e("s_nop 0")
        e(f"buffer_load_dwordx4 v{t}, s[{SX}:{SX+3}], 0 offen lds")
    tsn(e, "xissued")
    vP0a, vP0b, vPn, vP8 = 10, 11, 12, 13
    vK, vT = 6, 7
    e(f"""
    v_lshrrev_b32 v{vT}, 1, v{vL}
    v_and_b32 v{vK}, 0x13, v{vT}
    v_and_b32 v8, 4, v{vT}
    v_lshlrev_b32 v8, 1, v8
    v_or_b32 v{vK}, v{vK}, v8
    v_and_b32 v8, 8, v{vT}
    v_lshrrev_b32 v8, 1, v8
    v_or_b32 v{vK}, v{vK}, v8
    v_and_b32 v8, 1, v{vL}
    v_lshlrev_b32 v8, 4, v8
    s_lshl_b32 s{sC}, s{sJ}, 5
    v_add_u32 v8, s{sC}, v8
    s_lshl_b32 s{sA}, s{sW}, 6
    v_add_u32 v9, s{sA}, v{vK}
    v_mul_u32_u24 v{vPn}, 288, v9
    v_add_u32 v{vPn}, v{vPn}, v8
    v_subrev_u32 v{vP0a}, {144*288}, v{vPn}
    v_subrev_u32 v{vP0b}, {112*288}, v{vPn}
    v_add_u32 v{vPn}, {144*288}, v{vPn}
    s_mul_i32 s{sA}, s{sW}, 576
    s_add_u32 s{sA}, s{sA}, 112
    v_add_u32 v9, s{sA}, v{vK}
    v_mul_u32_u24 v{vP8}, 288, v9
    v_add_u32 v{vP8}, v{vP8}, v8
    s_mul_i32 s{sRingW}, s{sW}, {NSLOT*1024}
    s_add_u32 s{sRingW}, s{sRingW}, {RING}
    """)
    units = [(0, P) for P in range(8)] + [(1, P) for P in range(8)] + [(2, 0), (2, 1)]
    def issue_unit(u):
        c, P = units[u]
        slot = u % NSLOT
        e(f"s_add_u32 m0, s{sRingW}, {slot*1024}")
        if c < 2 and P == 0:
            e("s_nop 0")
            e(f"buffer_load_dwordx4 v{vP0a if c == 0 else vP0b}, s[{SW1}:{SW1+3}], 0 offen lds")
        elif c < 2:
            e(f"s_mov_b32 s{sA}, {(288*(P-1) + 32*c) * 288}")
            e(f"buffer_load_dwordx4 v{vPn}, s[{SW1}:{SW1+3}], s{sA} offen lds")
        else:
            e(f"s_mov_b32 s{sA}, {P*288*288}")
            e(f"buffer_load_dwordx4 v{vP8}, s[{SW1}:{SW1+3}], s{sA} offen lds")
    for u in range(NSLOT): issue_unit(u)
    vXa, vX8, vWr = 14, 15, 9
    e(f"""
    v_mul_u32_u24 v{vXa}, 5920, v{vM}
    v_lshl_add_u32 v{vXa}, v{vG_}, 4, v{vXa}
    s_mul_i32 s{sA}, s{sW}, 1184
    s_add_u32 s{sA}, s{sA}, 512
    v_add_u32 v{vX8}, s{sA}, v{vXa}
    s_lshl_b32 s{sA}, s{sW}, 7
    v_add_u32 v{vXa}, s{sA}, v{vXa}
    v_lshrrev_b32 v6, 1, v{vG_}
    v_lshlrev_b32 v6, 4, v6
    v_and_b32 v7, 1, v{vG_}
    v_lshl_add_u32 v6, v7, 2, v6
    v_add_u32 v6, v6, v{vRR}
    v_lshlrev_b32 v6, 5, v6
    v_lshl_add_u32 v6, v{vC4}, 3, v6
    v_add_u32 v{vWr}, s{sRingW}, v6
    """)
    ACC, XA, XB, WF = 16, 56, 124, 192
    def w2_loads():
        e(f"s_mul_i32 s{sA}, s{sJ}, 4608")
        for i in range(17):
            t, t2 = 200 + 2 * (i & 1), 201 + 2 * (i & 1)
            e(f"v_add_u32 v{t}, {256*i}, v0")
            e(f"v_mul_u32_u24 v{t2}, 14564, v{t}")
            e(f"v_lshrrev_b32 v{t2}, 22, v{t2}")
            e(f"v_mul_u32_u24 v{t2}, {41472-4608}, v{t2}")
            e(f"v_lshl_add_u32 v{t}, v{t}, 4, v{t2}")
            e(f"buffer_load_dwordx4 a[{4*i}:{4*i+3}], v{t}, s[{SW2}:{SW2+3}], s{sA} offen")
    ts(e, 1)
    tsn(e, "issued")
    e("s_waitcnt vmcnt(15)")
    e("s_barrier")
    tsn(e, "bar1")
    ts(e, 2)
    def xread(dst, J, c):
        if c < 2: e(f"ds_read_b128 v[{dst+4*J}:{dst+4*J+3}], v{vXa} offset:{J*592 + c*64}")
        else: e(f"ds_read_b128 v[{dst+4*J}:{dst+4*J+3}], v{vX8} offset:{J*592}")
    def wread(u):
        slot = u % NSLOT
        d = WF + 4 * (u & 1)
        e(f"ds_read_b64_tr_b16 v[{d}:{d+1}], v{vWr} offset:{slot*1024}")
        e(f"ds_read_b64_tr_b16 v[{d+2}:{d+3}], v{vWr} offset:{slot*1024+256}")
    def vm_for(u):
        if u <= 2: return 14
        if u <= 14: return 34 - u
        return 34 - u
    for J in range(17): xread(XA, J, 0)
    e("s_waitcnt vmcnt(14)")
    wread(0)
    pend = []
    for u, (c, P) in enumerate(units):
        e("s_waitcnt lgkmcnt(0)")
        tsn(e, f"u{u}")
        if u + NSLOT < len(units):
            issue_unit(u + NSLOT)
            if u + NSLOT == len(units) - 1: w2_loads()
        if u + 1 < len(units):
            n = u + 1
            issued_after = min(len(units) - 1, u + NSLOT) - n
            if u + NSLOT >= len(units) - 1: issued_after += 17
            e(f"s_waitcnt vmcnt({issued_after})")
            wread(n)
        if c == 0:
            js = [j for j in range(17) if j * 8 // 17 == P]
            for J in js: xread(XB, J, 1)
        elif c == 1:
            js = [j for j in range(11) if j * 8 // 11 == P]
            for J in js: xread(XA, J, 2)
        X = XB if c == 1 else XA
        d = WF + 4 * (u & 1)
        for jt in range(10):
            cin = "0" if u == 0 else f"v[{ACC+4*jt}:{ACC+4*jt+3}]"
            e(f"{MF32} v[{ACC+4*jt}:{ACC+4*jt+3}], v[{d}:{d+3}], v[{X+4*(jt+P)}:{X+4*(jt+P)+3}], {cin}")
    ts(e, 3)
    tsn(e, "c1end")
    e(f"v_lshlrev_b32 v6, 4, v{vL}")
    e(f"v_add_u32 v7, s{sRingW}, v6")
    e("s_nop 7")
    for jt in range(10):
        e(f"ds_write_b128 v7, v[{ACC+4*jt}:{ACC+4*jt+3}] offset:{jt*1024}")
    e(f"v_add_u32 v8, {RING}, v6")
    e(f"v_add_u32 v8, s{sW1024}, v8")
    e("s_waitcnt lgkmcnt(0)")
    e("s_barrier")
    tsn(e, "redbar")
    R = 56
    for k in range(3):
        for src in range(4):
            d = R + 16 * k + 4 * src
            e(f"ds_read_b128 v[{d}:{d+3}], v8 offset:{src*NSLOT*1024 + k*4096}")
    vC1, vC2 = 10, 11
    e(f"v_mov_b32 v{vC1}, {f2h(GC1)}")
    e(f"v_mov_b32 v{vC2}, {f2h(GC2)}")
    e(f"v_mul_u32_u24 v12, 10, v{vM}")
    e(f"v_add_u32 v12, s{sW}, v12")
    e(f"s_lshl_b32 s{sA}, s{sT0}, 1")
    e(f"s_sub_u32 s{sA}, s{sA}, 8")
    e(f"s_movk_i32 s{sBt}, 2000")
    e("s_waitcnt lgkmcnt(0)")
    for k in range(3):
        if k == 2:
            e(f"s_cmp_ge_u32 s{sW}, 2")
            e("s_cbranch_scc1 K1_RED_DONE")
        d = R + 16 * k
        for r in range(4): e(f"v_add_f32 v{d+r}, v{d+r}, v{d+4+r}")
        for r in range(4): e(f"v_add_f32 v{d+8+r}, v{d+8+r}, v{d+12+r}")
        for r in range(4): e(f"v_add_f32 v{d+r}, v{d+r}, v{d+8+r}")
        gelu(e, [d + r for r in range(4)], [d + 4 + r for r in range(4)], vC1, vC2)
        e(f"v_add_u32 v13, {4*k}, v12")
        e(f"v_add_u32 v6, s{sA}, v13")
        e(f"v_cmp_gt_u32 vcc, s{sBt}, v6")
        e(f"v_cvt_pk_bf16_f32 v{d+4}, v{d}, v{d+1}")
        e(f"v_cvt_pk_bf16_f32 v{d+5}, v{d+2}, v{d+3}")
        e(f"v_cndmask_b32 v{d+4}, 0, v{d+4}, vcc")
        e(f"v_cndmask_b32 v{d+5}, 0, v{d+5}, vcc")
        e("v_lshrrev_b32 v7, 1, v13")
        e("v_mul_u32_u24 v7, 96, v7")
        e("v_and_b32 v13, 1, v13")
        e("v_lshl_add_u32 v7, v13, 5, v7")
        e(f"v_lshl_add_u32 v7, v{vG_}, 3, v7")
        e(f"v_add_u32 v7, {HB}, v7")
        e(f"ds_write_b64 v7, v[{d+4}:{d+5}]")
    e("K1_RED_DONE:")
    tsn(e, "gelu")
    e("s_waitcnt vmcnt(0)")
    for i in range(17):
        t, t2 = 200 + 2 * (i & 1), 201 + 2 * (i & 1)
        e(f"v_add_u32 v{t}, {256*i}, v0")
        e(f"v_mul_u32_u24 v{t2}, 29128, v{t}")
        e(f"v_lshrrev_b32 v{t2}, 22, v{t2}")
        e(f"v_lshlrev_b32 v{t2}, 7, v{t2}")
        e(f"v_lshl_add_u32 v{t}, v{t}, 4, v{t2}")
        e(f"ds_write_b128 v{t}, a[{4*i}:{4*i+3}] offset:{W2B}")
    tsn(e, "w2w")
    vH, vAB0, vAB1, vC0, vC1b = 6, 7, 8, 12, 13
    e(f"""
    v_mul_u32_u24 v{vH}, 480, v{vM}
    v_lshl_add_u32 v{vH}, v{vG_}, 4, v{vH}
    v_add_u32 v{vH}, {HB}, v{vH}
    v_lshrrev_b32 v14, 1, v{vG_}
    v_mul_u32_u24 v14, 4864, v14
    v_and_b32 v15, 1, v{vG_}
    v_mul_u32_u24 v15, 2432, v15
    v_add_u32 v14, v14, v15
    v_mul_u32_u24 v15, 288, v{vRR}
    v_add_u32 v14, v14, v15
    v_lshl_add_u32 v{vC0}, v{vC4}, 3, v14
    v_add_u32 v{vC0}, 256, v{vC0}
    v_add_u32 v{vC1b}, 38912, v{vC0}
    v_lshl_add_u32 v{vAB0}, v{vC4}, 4, v14
    s_lshl_b32 s{sA}, s{sW}, 6
    v_add_u32 v{vAB0}, s{sA}, v{vAB0}
    v_add_u32 v{vAB1}, 38912, v{vAB0}
    """)
    e("s_waitcnt lgkmcnt(0)")
    e("s_barrier")
    ts(e, 4)
    tsn(e, "bar3")
    W2F, HF, AC2 = 56, 152, 200
    def w2read(P, tile):
        d = W2F + (tile * 8 + P) * 4
        base = (P % 4) * 9728
        if tile < 2:
            va = vAB0 if P < 4 else vAB1
            off = base + tile * 8
        else:
            va = vC0 if P < 4 else vC1b
            off = base
        e(f"ds_read_b64_tr_b16 v[{d}:{d+1}], v{va} offset:{off}")
        e(f"ds_read_b64_tr_b16 v[{d+2}:{d+3}], v{va} offset:{off+1152}")
    HW = 16
    e(f"s_mul_i32 s{sA}, s{sW}, 96")
    e(f"v_add_u32 v15, s{sA}, v{vH}")
    for J in range(12): e(f"ds_read_b128 v[{HF+4*J}:{HF+4*J+3}], v{vH} offset:{J*96}")
    for P in range(8): e(f"ds_read_b128 v[{HW+4*P}:{HW+4*P+3}], v15 offset:{P*96}")
    for tile in range(3): w2read(0, tile)
    e(f"v_cmp_lt_u32 vcc, 31, v{vL}")
    e("s_nop 0")
    e("s_waitcnt lgkmcnt(0)")
    for tile in range(3):
        d = W2F + tile * 32
        for r in range(4): e(f"v_cndmask_b32 v{d+r}, 0, v{d+r}, vcc")
    tsn(e, "c2rd")
    for tile in range(3): w2read(1, tile)
    e("s_nop 0")
    def acc(tile, k): return AC2 + 4 * (tile * 5 + k) if tile < 2 else AC2 + 40 + 4 * k
    for P in range(8):
        if P + 2 < 8:
            for tile in range(3): w2read(P + 2, tile)
        if P >= 1:
            e(f"s_waitcnt lgkmcnt({6 * (min(P + 2, 7) - P)})")
        for tile in range(2):
            wf = W2F + (tile * 8 + P) * 4
            for jt in range(5):
                ac = acc(tile, jt)
                cin = "0" if P == 0 else f"v[{ac}:{ac+3}]"
                e(f"{MF32} v[{ac}:{ac+3}], v[{wf}:{wf+3}], v[{HF+4*(jt+P)}:{HF+4*(jt+P)+3}], {cin}")
        wf = W2F + (16 + P) * 4
        ac = acc(2, 0); cin = "0" if P == 0 else f"v[{ac}:{ac+3}]"
        e(f"{MF32} v[{ac}:{ac+3}], v[{wf}:{wf+3}], v[{HW+4*P}:{HW+4*P+3}], {cin}")
        ac = acc(2, 1); cin = "0" if P == 0 else f"v[{ac}:{ac+3}]"
        e(f"{MF32} v[{ac}:{ac+3}], v[{wf}:{wf+3}], v[{HF+4*(4+P)}:{HF+4*(4+P)+3}], {cin}")
    ts(e, 5)
    e(f"""
    s_mul_i32 s{sA}, s{sB}, 1008
    s_add_u32 s{sA}, s{sA}, s{sT0}
    s_mul_i32 s{sA}, s{sA}, 2592
    s_mul_i32 s{sBt}, s{sJ}, 288
    s_add_u32 s{sA}, s{sA}, s{sBt}
    v_mul_u32_u24 v14, 5, v{vM}
    v_mul_u32_u24 v15, {5*2592}, v{vM}
    v_add_u32 v15, s{sA}, v15
    v_lshl_add_u32 v6, v{vG_}, 4, v15
    s_lshl_b32 s{sBt}, s{sW}, 6
    v_add_u32 v6, s{sBt}, v6
    v_lshl_add_u32 v7, v{vG_}, 3, v15
    v_add_u32 v7, 256, v7
    v_mov_b32 v8, 0x80000000
    """)
    for jt in range(5):
        A, B_ = acc(0, jt), acc(1, jt)
        d = 56 + 4 * jt
        e(f"v_cvt_pk_bf16_f32 v{d}, v{A}, v{A+1}")
        e(f"v_cvt_pk_bf16_f32 v{d+1}, v{A+2}, v{A+3}")
        e(f"v_cvt_pk_bf16_f32 v{d+2}, v{B_}, v{B_+1}")
        e(f"v_cvt_pk_bf16_f32 v{d+3}, v{B_+2}, v{B_+3}")
        e(f"v_add_u32 v12, {jt}, v14")
        e(f"v_cmp_gt_u32 vcc, 72, v12")
        e(f"v_add_u32 v13, {jt*2592}, v6")
        e("s_nop 0")
        e(f"v_cndmask_b32 v{80+jt}, v8, v13, vcc")
        e(f"buffer_store_dwordx4 v[{d}:{d+3}], v{80+jt}, s[{SWS}:{SWS+3}], 0 offen")
    A = acc(2, 0)
    e(f"v_cvt_pk_bf16_f32 v86, v{A}, v{A+1}")
    e(f"v_cvt_pk_bf16_f32 v87, v{A+2}, v{A+3}")
    e(f"v_add_u32 v12, s{sW}, v14")
    e(f"v_cmp_gt_u32 vcc, 72, v12")
    e(f"s_mul_i32 s{sBt}, s{sW}, 2592")
    e(f"v_add_u32 v13, s{sBt}, v7")
    e("s_nop 0")
    e("v_cndmask_b32 v85, v8, v13, vcc")
    e(f"buffer_store_dwordx2 v[86:87], v85, s[{SWS}:{SWS+3}], 0 offen")
    e(f"s_cmp_lg_u32 s{sW}, 0")
    e("s_cbranch_scc1 K1_END")
    A = acc(2, 1)
    e(f"v_cvt_pk_bf16_f32 v90, v{A}, v{A+1}")
    e(f"v_cvt_pk_bf16_f32 v91, v{A+2}, v{A+3}")
    e("v_add_u32 v12, 4, v14")
    e("v_cmp_gt_u32 vcc, 72, v12")
    e(f"v_add_u32 v13, {4*2592}, v7")
    e("s_nop 0")
    e("v_cndmask_b32 v89, v8, v13, vcc")
    e(f"buffer_store_dwordx2 v[90:91], v89, s[{SWS}:{SWS+3}], 0 offen")
    ts(e, 6)
    ts_dump(e, 7, TSB, SWS, sW)
    e("s_endpgm")
    e("K1_AUX:")
    e("""
    s_load_dwordx2 s[40:41], s[0:1], 24
    s_load_dwordx2 s[42:43], s[0:1], 40
    v_lshrrev_b32 v6, 6, v0
    v_and_b32 v1, 63, v0
    """)
    e(f"v_readfirstlane_b32 s{sW}, v6")
    lane_parts(e, vL, vM, vG_, vRR, vC4)
    e("s_waitcnt lgkmcnt(0)")
    srd(e, 4, 40, 4608)
    srd(e, 8, 42, 41472)
    srd(e, SWS, 26, WS_SIZE)
    e(f"s_lshl_b32 s{sW1024}, s{sW}, 10")
    wimg_dma(e, 8, 0, 6, 7, 0, sW1024, sA)
    e(f"v_mul_u32_u24 v6, 288, v{vM}")
    e(f"v_lshl_add_u32 v7, v{vG_}, 3, v6")
    e(f"v_lshl_add_u32 v6, v{vG_}, 4, v6")
    GB = 16
    for kc in range(4): e(f"buffer_load_dwordx4 v[{GB+4*kc}:{GB+4*kc+3}], v6, s[4:7], 0 offen offset:{kc*64}")
    e(f"buffer_load_dwordx2 v[{GB+16}:{GB+17}], v7, s[4:7], 0 offen offset:256")
    small_gemm_addr(e, vG_, vRR, vC4, sW, sA, 12, 13, 14, 15, 0)
    e("s_waitcnt vmcnt(0)")
    e("s_barrier")
    D = 40
    small_gemm(e, 12, 13, 14, 15, GB, 64, D)
    e(f"""
    v_and_b32 v6, 7, v{vM}
    v_mul_u32_u24 v7, 576, v6
    v_lshrrev_b32 v6, 2, v6
    v_lshl_add_u32 v7, v6, 4, v7
    v_lshrrev_b32 v6, 3, v{vM}
    v_lshl_add_u32 v7, v6, 13, v7
    v_lshl_add_u32 v7, v{vG_}, 4, v7
    v_add_u32 v7, {WS_GE}, v7
    s_lshl_b32 s{sA}, s{sW}, 6
    v_add_u32 v8, s{sA}, v7
    v_mov_b32 v9, {f2h(TS)}
    s_nop 7
    """)
    for t in range(3):
        d = D + 4 * t
        round_scale(e, d, 9, 60)
    e(f"buffer_store_dwordx4 v[{D}:{D+3}], v8, s[{SWS}:{SWS+3}], 0 offen")
    e(f"buffer_store_dwordx4 v[{D+4}:{D+7}], v8, s[{SWS}:{SWS+3}], 0 offen offset:256")
    e(f"buffer_store_dwordx4 v[{D+8}:{D+11}], v7, s[{SWS}:{SWS+3}], 0 offen offset:512")
    e("K1_END:")
    e("s_endpgm")

def round_scale(e, d, vs, t):
    e(f"v_cvt_pk_bf16_f32 v{t}, v{d}, v{d+1}")
    e(f"v_cvt_pk_bf16_f32 v{t+1}, v{d+2}, v{d+3}")
    e(f"v_lshlrev_b32 v{d}, 16, v{t}")
    e(f"v_and_b32 v{d+1}, 0xffff0000, v{t}")
    e(f"v_lshlrev_b32 v{d+2}, 16, v{t+1}")
    e(f"v_and_b32 v{d+3}, 0xffff0000, v{t+1}")
    for r in range(4): e(f"v_mul_f32 v{d+r}, v{vs}, v{d+r}")

def small_gemm_addr(e, vG_, vRR, vC4, sW, sA, vA, vA8, vAh, vAh8, base):
    e(f"""
    v_mul_u32_u24 v{vA8}, 2432, v{vG_}
    v_mul_u32_u24 v{vAh8}, 288, v{vRR}
    v_lshl_add_u32 v{vAh8}, v{vC4}, 3, v{vAh8}
    v_add_u32 v{vA8}, v{vA8}, v{vAh8}
    v_lshrrev_b32 v{vA}, 1, v{vG_}
    v_mul_u32_u24 v{vA}, 2432, v{vA}
    v_add_u32 v{vAh8}, v{vAh8}, v{vA}
    v_and_b32 v{vA}, 1, v{vG_}
    v_mul_u32_u24 v{vA}, 1152, v{vA}
    v_add_u32 v{vAh8}, v{vAh8}, v{vA}
    v_add_u32 v{vAh8}, {16*2432 + base}, v{vAh8}
    v_add_u32 v{vA8}, {base}, v{vA8}
    s_lshl_b32 s{sA}, s{sW}, 5
    v_add_u32 v{vA}, s{sA}, v{vA8}
    v_add_u32 v{vAh}, s{sA}, v{vAh8}
    v_add_u32 v{vA8}, 256, v{vA8}
    v_add_u32 v{vAh8}, 256, v{vAh8}
    """)

def small_gemm(e, vA, vA8, vAh, vAh8, B, WF, D):
    for t in range(3):
        va, vh = (vA, vAh) if t < 2 else (vA8, vAh8)
        co = 128 if t == 1 else 0
        for kc in range(4):
            d = WF + t * 18 + kc * 4
            e(f"ds_read_b64_tr_b16 v[{d}:{d+1}], v{va} offset:{kc*9728 + co}")
            e(f"ds_read_b64_tr_b16 v[{d+2}:{d+3}], v{va} offset:{kc*9728 + co + 1152}")
        d = WF + t * 18 + 16
        e(f"ds_read_b64_tr_b16 v[{d}:{d+1}], v{vh} offset:{co}")
    e("s_waitcnt lgkmcnt(0)")
    for kc in range(4):
        for t in range(3):
            ac = D + 4 * t
            d = WF + t * 18 + kc * 4
            cin = "0" if kc == 0 else f"v[{ac}:{ac+3}]"
            e(f"{MF32} v[{ac}:{ac+3}], v[{d}:{d+3}], v[{B+4*kc}:{B+4*kc+3}], {cin}")
    e("s_nop 4")
    for t in range(3):
        ac = D + 4 * t
        d = WF + t * 18 + 16
        e(f"{MF16} v[{ac}:{ac+3}], v[{d}:{d+1}], v[{B+16}:{B+17}], v[{ac}:{ac+3}]")
```

```python
from common import *

import os
RING, NSLOT, PRE = 102400, 10, int(os.environ.get("PRE", 6))
W2B, HB, WFB, WOB, FB = 4864, 143360, 78848, 0, 46080
WS_FL = WS_GE + 16384
M_WS = (8 << 20) if TSON else WS_FL + 28 * 128
OOB = "0x80000000"
SX, SW1, SW2, SWS, SDBG, SWF, SWO, SO = 4, 8, 12, 16, 40, 80, 84, 88
sG, sJ, sB, sGG, sW, sT0 = 28, 29, 30, 31, 32, 33
sA, sBt, sC, sRingW, sW1024, sR = 34, 35, 36, 37, 38, 39
sK1, sK2 = 92, 93
vL, vM, vG_, vRR, vC4 = 1, 2, 3, 4, 5
vFlagW, vDbg, vChk, vPoll, vExp, vOne, vT16 = 248, 249, 250, 251, 252, 253, 254
ACC, XA, XB, WF = 16, 56, 124, 192

def img_dma(e, srd_, i, base, t, t2, soff="0", two=False):
    e(f"v_add_u32 v{t}, {4096*i}, v{vT16}")
    e(f"v_mul_u32_u24 v{t2}, 27595, v{t}")
    if two:
        e(f"v_lshrrev_b32 v{t2+1}, 27, v{t2}")
    e(f"v_lshrrev_b32 v{t2}, 26, v{t2}")
    if two:
        e(f"v_mad_u32_u24 v{t}, v{t2+1}, s{sK1}, v{t}")
    e(f"s_add_u32 m0, s{sW1024}, {base + 4096*i}")
    e(f"v_mad_i32_i24 v{t}, v{t2}, s{sK2}, v{t}")
    e(f"buffer_load_dwordx4 v{t}, s[{srd_}:{srd_+3}], {soff} offen lds")

def prologue(e):
    e("""
    s_load_dwordx4 s[20:23], s[0:1], 0
    s_load_dwordx4 s[52:55], s[0:1], 64
    s_load_dwordx2 s[24:25], s[0:1], 16
    s_load_dwordx2 s[44:45], s[0:1], 32
    s_load_dwordx4 s[48:51], s[0:1], 48
    s_cmp_ge_u32 s2, 256
    s_cbranch_scc1 K1_END
    """)
    e(f"""
    s_and_b32 s{sA}, s2, 7
    s_lshr_b32 s{sBt}, s2, 3
    s_cmp_ge_u32 s{sBt}, 27
    s_cbranch_scc1 K1_TAILMAP
    s_mul_i32 s{sC}, s{sBt}, 57
    s_lshr_b32 s{sC}, s{sC}, 9
    s_mul_i32 s{sG}, s{sA}, 3
    s_add_u32 s{sG}, s{sG}, s{sC}
    s_mul_i32 s{sC}, s{sC}, 9
    s_sub_u32 s{sJ}, s{sBt}, s{sC}
    s_branch K1_MAPPED
    K1_TAILMAP:
    s_and_b32 s{sC}, s{sA}, 1
    s_mul_i32 s{sC}, s{sC}, 5
    s_add_u32 s{sC}, s{sC}, s{sBt}
    s_sub_u32 s{sJ}, s{sC}, 27
    s_lshr_b32 s{sG}, s{sA}, 1
    s_cmp_lt_u32 s{sJ}, 9
    s_cbranch_scc1 K1_TAILOK
    s_cmp_eq_u32 s{sG}, 0
    s_cbranch_scc1 K1_AUX
    s_branch K1_END
    K1_TAILOK:
    s_add_u32 s{sG}, s{sG}, 24
    K1_MAPPED:
    s_cmp_ge_u32 s{sG}, 14
    s_cselect_b32 s{sB}, 1, 0
    s_mul_i32 s{sC}, s{sB}, 14
    s_sub_u32 s{sGG}, s{sG}, s{sC}
    s_mul_i32 s{sT0}, s{sGG}, 72
    v_lshrrev_b32 v6, 6, v0
    v_and_b32 v{vL}, 63, v0
    v_readfirstlane_b32 s{sW}, v6
    """)
    lane_parts(e, vL, vM, vG_, vRR, vC4)
    e(f"""
    s_lshl_b32 s{sA}, s{sG}, 7
    s_add_u32 s{sA}, s{sA}, {WS_FL}
    s_lshl_b32 s{sBt}, s{sJ}, 2
    s_add_u32 s{sBt}, s{sBt}, s{sA}
    v_min_u32 v6, 8, v{vL}
    v_lshl_add_u32 v{vPoll}, v6, 2, s{sA}
    v_cmp_eq_u32 vcc, 0, v0
    v_mov_b32 v6, {OOB}
    v_mov_b32 v7, s{sBt}
    s_lshl_b32 s{sA}, s{sG}, 3
    v_mov_b32 v8, s{sA}
    v_cndmask_b32 v{vFlagW}, v6, v7, vcc
    v_cndmask_b32 v{vDbg}, v6, v8, vcc
    v_mov_b32 v{vOne}, 0
    v_lshlrev_b32 v{vT16}, 4, v0
    s_lshl_b32 s{sW1024}, s{sW}, 10
    s_mul_i32 s{sC}, s{sB}, 1152000
    s_waitcnt lgkmcnt(0)
    s_add_u32 s{SX}, s20, s{sC}
    s_addc_u32 s{SX+1}, s21, 0
    s_and_b32 s{SX+1}, s{SX+1}, 0xffff
    s_mov_b32 s{SX+2}, 1152000
    s_mov_b32 s{SX+3}, 0x20000
    """)
    srd(e, SWS, 54, M_WS)
    e(f"""
    s_lshl_b32 s{sC}, s{sT0}, 1
    s_sub_u32 s{sC}, s{sC}, 12
    s_mul_i32 s{sC}, s{sC}, 576
    """)
    e(f"buffer_store_dword v{vOne}, v{vFlagW}, s[{SWS}:{SWS+3}], 0 offen sc1")
    for i in range(25):
        t, t2 = 6 + 2 * (i & 1), 7 + 2 * (i & 1)
        e(f"v_add_u32 v{t}, {256*i}, v0")
        e(f"v_mul_u32_u24 v{t2}, 113360, v{t}")
        e(f"v_lshrrev_b32 v{t2}, 22, v{t2}")
        e(f"v_sub_u32 v{t}, v{t}, v{t2}")
        e(f"s_add_u32 m0, s{sW1024}, {4096*i}")
        e(f"v_lshl_add_u32 v{t}, v{t}, 4, s{sC}")
        e(f"buffer_load_dwordx4 v{t}, s[{SX}:{SX+3}], 0 offen lds")
    tsn(e, "xissued")
    srd(e, SW1, 22, 622080)
    srd(e, SW2, 24, 622080)
    srd(e, SDBG, 52, 256)
    srd(e, SWF, 44, 41472)
    srd(e, SWO, 48, 41472)
    srd(e, SO, 50, 4608000)
    e(f"s_mov_b32 s{sK1}, 36864")
    e(f"s_mov_b32 s{sK2}, -128")

def conv1(e):
    vP0a, vP0b, vPn, vP8 = 10, 11, 12, 13
    vK, vT = 6, 7
    e(f"""
    v_lshrrev_b32 v{vT}, 1, v{vL}
    v_and_b32 v{vK}, 0x13, v{vT}
    v_and_b32 v8, 4, v{vT}
    v_lshlrev_b32 v8, 1, v8
    v_or_b32 v{vK}, v{vK}, v8
    v_and_b32 v8, 8, v{vT}
    v_lshrrev_b32 v8, 1, v8
    v_or_b32 v{vK}, v{vK}, v8
    v_and_b32 v8, 1, v{vL}
    v_lshlrev_b32 v8, 4, v8
    s_lshl_b32 s{sC}, s{sJ}, 5
    v_add_u32 v8, s{sC}, v8
    s_lshl_b32 s{sA}, s{sW}, 6
    v_add_u32 v9, s{sA}, v{vK}
    v_mul_u32_u24 v{vPn}, 288, v9
    v_add_u32 v{vPn}, v{vPn}, v8
    v_subrev_u32 v{vP0a}, {144*288}, v{vPn}
    v_subrev_u32 v{vP0b}, {112*288}, v{vPn}
    v_add_u32 v{vPn}, {144*288}, v{vPn}
    s_mul_i32 s{sA}, s{sW}, 576
    s_add_u32 s{sA}, s{sA}, 112
    v_add_u32 v9, s{sA}, v{vK}
    v_mul_u32_u24 v{vP8}, 288, v9
    v_add_u32 v{vP8}, v{vP8}, v8
    s_mul_i32 s{sRingW}, s{sW}, {NSLOT*1024}
    s_add_u32 s{sRingW}, s{sRingW}, {RING}
    """)
    units = [(0, P) for P in range(8)] + [(1, P) for P in range(8)] + [(2, 0), (2, 1)]
    NU = len(units)
    vm = []
    def issue_unit(u):
        c, P = units[u]
        e(f"s_add_u32 m0, s{sRingW}, {(u % NSLOT)*1024}")
        if c < 2 and P == 0:
            e("s_nop 0")
            e(f"buffer_load_dwordx4 v{vP0a if c == 0 else vP0b}, s[{SW1}:{SW1+3}], 0 offen lds")
        elif c < 2:
            e(f"s_mov_b32 s{sA}, {(288*(P-1) + 32*c) * 288}")
            e(f"buffer_load_dwordx4 v{vPn}, s[{SW1}:{SW1+3}], s{sA} offen lds")
        else:
            e(f"s_mov_b32 s{sA}, {P*288*288}")
            e(f"buffer_load_dwordx4 v{vP8}, s[{SW1}:{SW1+3}], s{sA} offen lds")
        vm.append(("u", u))
    def wait_unit(n):
        e(f"s_waitcnt vmcnt({len(vm) - 1 - vm.index(('u', n))})")
    for u in range(PRE): issue_unit(u)
    vXa, vX8, vWr = 14, 15, 9
    e(f"""
    v_mul_u32_u24 v{vXa}, 5920, v{vM}
    v_lshl_add_u32 v{vXa}, v{vG_}, 4, v{vXa}
    s_mul_i32 s{sA}, s{sW}, 1184
    s_add_u32 s{sA}, s{sA}, 512
    v_add_u32 v{vX8}, s{sA}, v{vXa}
    s_lshl_b32 s{sA}, s{sW}, 7
    v_add_u32 v{vXa}, s{sA}, v{vXa}
    v_lshrrev_b32 v6, 1, v{vG_}
    v_lshlrev_b32 v6, 4, v6
    v_and_b32 v7, 1, v{vG_}
    v_lshl_add_u32 v6, v7, 2, v6
    v_add_u32 v6, v6, v{vRR}
    v_lshlrev_b32 v6, 5, v6
    v_lshl_add_u32 v6, v{vC4}, 3, v6
    v_add_u32 v{vWr}, s{sRingW}, v6
    v_mov_b32 v{vOne}, 1
    s_mul_i32 s{sBt}, s{sJ}, 4608
    """)
    tsn(e, "issued")
    e(f"s_waitcnt vmcnt({PRE})")
    e("s_barrier")
    tsn(e, "bar1")
    def xread(dst, J, c):
        if c < 2: e(f"ds_read_b128 v[{dst+4*J}:{dst+4*J+3}], v{vXa} offset:{J*592 + c*64}")
        else: e(f"ds_read_b128 v[{dst+4*J}:{dst+4*J+3}], v{vX8} offset:{J*592}")
    def wread(u):
        d = WF + 4 * (u & 1)
        e(f"ds_read_b64_tr_b16 v[{d}:{d+1}], v{vWr} offset:{(u % NSLOT)*1024}")
        e(f"ds_read_b64_tr_b16 v[{d+2}:{d+3}], v{vWr} offset:{(u % NSLOT)*1024+256}")
    for J in range(10): xread(XA, J, 0)
    e(f"buffer_atomic_add v{vOne}, v{vDbg}, s[{SDBG}:{SDBG+3}], 0 offen sc1")
    vm.append(("a", 0))
    wait_unit(0)
    wread(0)
    for J in range(10, 17): xread(XA, J, 0)
    w2i = 0
    for u, (c, P) in enumerate(units):
        if u == 0: e("s_waitcnt lgkmcnt(7)")
        elif u == 1: e("s_waitcnt lgkmcnt(0)")
        else: e("s_waitcnt lgkmcnt(0)")
        tsn(e, f"u{u}")
        if u == 10: e("s_barrier")
        if u + PRE < NU: issue_unit(u + PRE)
        elif u >= 12:
            for k in range(3):
                img_dma(e, SW2, w2i, W2B, 200 + 4 * (k & 1), 201 + 4 * (k & 1), f"s{sBt}", two=True)
                vm.append(("w2", w2i)); w2i += 1
        if u + 1 < NU:
            wait_unit(u + 1)
            wread(u + 1)
        if c == 0:
            for J in [j for j in range(17) if j * 8 // 17 == P]: xread(XB, J, 1)
        elif u in (8, 9):
            for J in (range(6) if u == 8 else range(6, 11)): xread(XA, J, 2)
        X = XB if c == 1 else XA
        d = WF + 4 * (u & 1)
        for jt in range(10):
            cin = "0" if u == 0 else f"v[{ACC+4*jt}:{ACC+4*jt+3}]"
            e(f"{MF32} v[{ACC+4*jt}:{ACC+4*jt+3}], v[{d}:{d+3}], v[{X+4*(jt+P)}:{X+4*(jt+P)+3}], {cin}")
    assert w2i == 18
    tsn(e, "c1end")

def reduce_gelu(e):
    e(f"""
    v_and_b32 v6, 1, v{vL}
    s_lshl_b32 s{sA}, s{sG}, 3
    v_mov_b32 v7, s{sA}
    v_mov_b32 v8, 248
    v_cmp_eq_u32 vcc, 0, v6
    v_lshlrev_b32 v6, 4, v{vL}
    v_add_u32 v9, s{sRingW}, v6
    v_cndmask_b32 v{vDbg}, v8, v7, vcc
    v_mov_b32 v7, 9
    v_mov_b32 v8, 1
    v_cndmask_b32 v{vExp}, v8, v7, vcc
    """)
    e(f"buffer_load_dword v{vChk}, v{vDbg}, s[{SDBG}:{SDBG+3}], 0 offen sc1")
    for jt in range(10):
        e(f"ds_write_b128 v9, v[{ACC+4*jt}:{ACC+4*jt+3}] offset:{jt*1024}")
    e(f"""
    v_add_u32 v8, {RING}, v6
    v_add_u32 v8, s{sW1024}, v8
    s_lshr_b32 s{sA}, s{sW}, 1
    s_lshl_b32 s{sA}, s{sA}, 10
    s_and_b32 s{sC}, s{sW}, 1
    s_lshl_b32 s{sC}, s{sC}, 3
    s_add_u32 s{sA}, s{sA}, s{sC}
    s_add_u32 s{sA}, s{sA}, {RING + 8*1024}
    v_add_u32 v9, s{sA}, v6
    v_mov_b32 v10, {f2h(GC1)}
    v_mov_b32 v11, {f2h(GC2)}
    v_mul_u32_u24 v12, 10, v{vM}
    s_lshl_b32 s{sA}, s{sT0}, 1
    s_sub_u32 s{sA}, s{sA}, 8
    s_movk_i32 s46, 2000
    """)
    for k in range(3):
        if k < 2: e(f"s_add_u32 s47, s{sW}, {4*k}")
        else:
            e(f"s_lshr_b32 s47, s{sW}, 1")
            e(f"s_add_u32 s47, s47, 8")
        e(f"v_add_u32 v13, s47, v12")
        e(f"v_add_u32 v6, s{sA}, v13")
        e(f"v_cmp_gt_u32 s[{26 if k == 0 else 94 if k == 1 else 56}:{27 if k == 0 else 95 if k == 1 else 57}], s46, v6")
        e("v_lshrrev_b32 v7, 1, v13")
        e("v_mul_u32_u24 v7, 96, v7")
        e("v_and_b32 v13, 1, v13")
        e("v_lshl_add_u32 v7, v13, 5, v7")
        e(f"v_lshl_add_u32 v7, v{vG_}, 3, v7")
        e(f"v_add_u32 v{200+k}, {HB}, v7")
    e(f"s_lshr_b32 s47, s{sC}, 1")
    e(f"v_add_u32 v202, s47, v202")
    e("s_waitcnt lgkmcnt(0)")
    e("s_barrier")
    tsn(e, "redbar")
    R = 56
    for k in range(2):
        for src in range(4):
            d = R + 16 * k + 4 * src
            e(f"ds_read_b128 v[{d}:{d+3}], v8 offset:{src*NSLOT*1024 + k*4096}")
    for src in range(4):
        d = R + 32 + 2 * src
        e(f"ds_read_b64 v[{d}:{d+1}], v9 offset:{src*NSLOT*1024}")
    masks = ["s[26:27]", "s[94:95]", "s[56:57]"]
    for k in range(3):
        n = 4 if k < 2 else 2
        d = R + 16 * k
        e(f"s_waitcnt lgkmcnt({[8, 5, 2][k]})" if k < 2 else "s_waitcnt lgkmcnt(2)")
        for r in range(n): e(f"v_add_f32 v{d+r}, v{d+r}, v{d+n+r}")
        for r in range(n): e(f"v_add_f32 v{d+2*n+r}, v{d+2*n+r}, v{d+3*n+r}")
        for r in range(n): e(f"v_add_f32 v{d+r}, v{d+r}, v{d+2*n+r}")
        gelu(e, [d + r for r in range(n)], [d + n + r for r in range(n)], 10, 11)
        for r in range(n // 2): e(f"v_cvt_pk_bf16_f32 v{d+4+r}, v{d+2*r}, v{d+2*r+1}")
        e("s_nop 0")
        for r in range(n // 2): e(f"v_cndmask_b32 v{d+4+r}, 0, v{d+4+r}, {masks[k]}")
        if k < 2: e(f"ds_write_b64 v{200+k}, v[{d+4}:{d+5}]")
        else: e(f"ds_write_b32 v{200+k}, v{d+4}")
    tsn(e, "gelu")
```

```python
from common import *
from m1a import *
from k1 import small_gemm_addr, small_gemm

def conv2_and_store(e):
    vH, vAB0, vAB1, vC0, vC1b = 6, 7, 8, 12, 13
    e(f"""
    v_mul_u32_u24 v{vH}, 480, v{vM}
    v_lshl_add_u32 v{vH}, v{vG_}, 4, v{vH}
    v_add_u32 v{vH}, {HB}, v{vH}
    v_lshrrev_b32 v14, 1, v{vG_}
    v_mul_u32_u24 v14, 4864, v14
    v_and_b32 v15, 1, v{vG_}
    v_mul_u32_u24 v15, 2432, v15
    v_add_u32 v14, v14, v15
    v_mul_u32_u24 v15, 288, v{vRR}
    v_add_u32 v14, v14, v15
    v_lshl_add_u32 v{vC0}, v{vC4}, 3, v14
    v_add_u32 v{vC0}, 256, v{vC0}
    v_add_u32 v{vC1b}, 38912, v{vC0}
    v_lshl_add_u32 v{vAB0}, v{vC4}, 4, v14
    s_lshl_b32 s{sA}, s{sW}, 6
    v_add_u32 v{vAB0}, s{sA}, v{vAB0}
    v_add_u32 v{vAB1}, 38912, v{vAB0}
    s_mul_i32 s{sA}, s{sW}, 96
    v_add_u32 v15, s{sA}, v{vH}
    """)
    e("s_waitcnt vmcnt(0) lgkmcnt(0)")
    e("s_barrier")
    tsn(e, "bar3")
    W2F, HF, AC2, HW = 56, 152, 200, 16
    def w2read(P, tile):
        d = W2F + (tile * 8 + P) * 4
        base = (P % 4) * 9728
        if tile < 2: va, off = (vAB0 if P < 4 else vAB1), base + tile * 8
        else: va, off = (vC0 if P < 4 else vC1b), base
        e(f"ds_read_b64_tr_b16 v[{d}:{d+1}], v{va} offset:{off}")
        e(f"ds_read_b64_tr_b16 v[{d+2}:{d+3}], v{va} offset:{off+1152}")
    def hread(J): e(f"ds_read_b128 v[{HF+4*J}:{HF+4*J+3}], v{vH} offset:{J*96}")
    def hwread(P): e(f"ds_read_b128 v[{HW+4*P}:{HW+4*P+3}], v15 offset:{P*96}")
    def acc(tile, k): return AC2 + 4 * (tile * 5 + k) if tile < 2 else AC2 + 40 + 4 * k
    for tile in range(3): w2read(0, tile)
    for J in range(5): hread(J)
    hwread(0)
    e(f"v_cmp_lt_u32 vcc, 31, v{vL}")
    e("s_waitcnt lgkmcnt(6)")
    for tile in range(3):
        d = W2F + tile * 32
        for r in range(4): e(f"v_cndmask_b32 v{d+r}, 0, v{d+r}, vcc")
    wfi = 0
    for P in range(8):
        e("s_waitcnt lgkmcnt(0)")
        if P + 1 < 8:
            for tile in range(3): w2read(P + 1, tile)
            hread(P + 5); hwread(P + 1)
        if P < 4:
            for k in range(3):
                if wfi < 11:
                    img_dma(e, SWF, wfi, WFB, 9, 10); wfi += 1
        for tile in range(2):
            wf = W2F + (tile * 8 + P) * 4
            for jt in range(5):
                ac = acc(tile, jt)
                cin = "0" if P == 0 else f"v[{ac}:{ac+3}]"
                e(f"{MF32} v[{ac}:{ac+3}], v[{wf}:{wf+3}], v[{HF+4*(jt+P)}:{HF+4*(jt+P)+3}], {cin}")
        wf = W2F + (16 + P) * 4
        ac = acc(2, 0); cin = "0" if P == 0 else f"v[{ac}:{ac+3}]"
        e(f"{MF32} v[{ac}:{ac+3}], v[{wf}:{wf+3}], v[{HW+4*P}:{HW+4*P+3}], {cin}")
        ac = acc(2, 1); cin = "0" if P == 0 else f"v[{ac}:{ac+3}]"
        e(f"{MF32} v[{ac}:{ac+3}], v[{wf}:{wf+3}], v[{HF+4*(4+P)}:{HF+4*(4+P)+3}], {cin}")
        if P == 5:
            e(f"""
            s_mul_i32 s{sA}, s{sB}, 1008
            s_add_u32 s{sA}, s{sA}, s{sT0}
            s_mul_i32 s{sA}, s{sA}, 2592
            s_mul_i32 s{sBt}, s{sJ}, 288
            s_add_u32 s{sA}, s{sA}, s{sBt}
            v_mul_u32_u24 v14, 5, v{vM}
            v_mul_u32_u24 v11, {5*2592}, v{vM}
            v_add_u32 v11, s{sA}, v11
            v_lshl_add_u32 v9, v{vG_}, 4, v11
            s_lshl_b32 s{sBt}, s{sW}, 6
            v_add_u32 v9, s{sBt}, v9
            v_lshl_add_u32 v10, v{vG_}, 3, v11
            v_add_u32 v10, 256, v10
            v_mov_b32 v11, {OOB}
            """)
        if P == 6:
            for jt in range(5):
                e(f"v_add_u32 v48, {jt}, v14")
                e(f"v_cmp_gt_u32 vcc, 72, v48")
                e(f"v_add_u32 v49, {jt*2592}, v9")
                e("s_nop 0")
                e(f"v_cndmask_b32 v{16+jt}, v11, v49, vcc")
        if P == 7:
            e(f"""
            v_add_u32 v48, s{sW}, v14
            v_cmp_gt_u32 vcc, 72, v48
            s_mul_i32 s{sBt}, s{sW}, 2592
            v_add_u32 v49, s{sBt}, v10
            v_add_u32 v48, 4, v14
            v_cndmask_b32 v21, v11, v49, vcc
            v_cmp_gt_u32 vcc, 72, v48
            v_add_u32 v49, {4*2592}, v10
            s_cmp_eq_u32 s{sW}, 0
            s_cselect_b64 s[46:47], -1, 0
            s_and_b64 vcc, vcc, s[46:47]
            v_cndmask_b32 v22, v11, v49, vcc
            """)
    tsn(e, "c2end")
    e("s_nop 1")
    for jt in range(5):
        A, B_ = acc(0, jt), acc(1, jt)
        d = 56 + 4 * jt
        e(f"v_cvt_pk_bf16_f32 v{d}, v{A}, v{A+1}")
        e(f"v_cvt_pk_bf16_f32 v{d+1}, v{A+2}, v{A+3}")
        e(f"v_cvt_pk_bf16_f32 v{d+2}, v{B_}, v{B_+1}")
        e(f"v_cvt_pk_bf16_f32 v{d+3}, v{B_+2}, v{B_+3}")
        e(f"buffer_store_dwordx4 v[{d}:{d+3}], v{16+jt}, s[{SWS}:{SWS+3}], 0 offen sc1")
    for k in range(2):
        A = acc(2, k)
        e(f"v_cvt_pk_bf16_f32 v{76+2*k}, v{A}, v{A+1}")
        e(f"v_cvt_pk_bf16_f32 v{77+2*k}, v{A+2}, v{A+3}")
        e(f"buffer_store_dwordx2 v[{76+2*k}:{77+2*k}], v{21+k}, s[{SWS}:{SWS+3}], 0 offen sc1")
    tsn(e, "stored")

def handoff(e):
    e(f"""
    s_cmp_lg_u32 s{sW}, 0
    s_cbranch_scc1 CHK_DONE
    s_mov_b32 s46, 0x40000
    CHK_LOOP:
    v_cmp_ne_u32 vcc, v{vChk}, v{vExp}
    s_sub_u32 s46, s46, 1
    s_cbranch_scc1 CHK_DONE
    s_cbranch_vccz CHK_DONE
    buffer_load_dword v{vChk}, v{vDbg}, s[{SDBG}:{SDBG+3}], 0 offen sc1
    s_waitcnt vmcnt(0)
    s_branch CHK_LOOP
    CHK_DONE:
    s_waitcnt vmcnt(7)
    s_barrier
    """)
    FE = 72
    e(f"""
    v_and_b32 v6, 7, v{vM}
    v_mul_u32_u24 v6, 576, v6
    v_lshl_add_u32 v6, v{vG_}, 4, v6
    s_mul_i32 s{sA}, s{sB}, 4608
    s_add_u32 s{sA}, s{sA}, {WS_GE}
    """)
    for a in range(9):
        e(f"buffer_load_dwordx4 v[{FE+4*a}:{FE+4*a+3}], v6, s[{SWS}:{SWS+3}], s{sA} offen offset:{64*a} sc1")
    for i in range(11): img_dma(e, SWO, i, WOB, 9, 10)
    e(f"""
    v_mul_u32_u24 v6, 288, v{vRR}
    v_lshl_add_u32 v6, v{vC4}, 3, v6
    v_mul_u32_u24 v7, 2432, v{vG_}
    v_add_u32 v7, v7, v6
    v_add_u32 v7, {WFB}, v7
    v_lshrrev_b32 v8, 1, v{vG_}
    v_mul_u32_u24 v8, 2432, v8
    v_add_u32 v6, v6, v8
    v_and_b32 v8, 1, v{vG_}
    v_mul_u32_u24 v8, 1152, v8
    v_add_u32 v6, v6, v8
    v_add_u32 v8, {WFB + 16*2432}, v6
    """)
    def wfread(a):
        for kc in range(4):
            d = a * 18 + kc * 4
            e(f"ds_read_b64_tr_b16 a[{d}:{d+1}], v7 offset:{kc*9728 + 32*a}")
            e(f"ds_read_b64_tr_b16 a[{d+2}:{d+3}], v7 offset:{kc*9728 + 32*a + 1152}")
        e(f"ds_read_b64_tr_b16 a[{a*18+16}:{a*18+17}], v8 offset:{32*a}")
    for a in range(5): wfread(a)
    e("s_waitcnt vmcnt(20)")
    e("s_barrier")
    tsn(e, "stdone")
    e(f"buffer_store_dword v{vOne}, v{vFlagW}, s[{SWS}:{SWS+3}], 0 offen sc1")
    e(f"""
    s_lshl_b32 s{sR}, s{sJ}, 3
    s_add_u32 s{sR}, s{sR}, s{sT0}
    s_cmp_ge_u32 s{sR}, 1000
    s_cbranch_scc1 K1_DRAIN
    """)
    for a in range(5, 9): wfread(a)
    e(f"""
    v_mul_u32_u24 v9, 3641, v0
    v_lshrrev_b32 v9, 16, v9
    v_mul_u32_u24 v10, 18, v9
    v_sub_u32 v10, v0, v10
    s_mul_i32 s{sA}, s{sB}, 1008
    s_add_u32 s{sA}, s{sA}, s{sR}
    s_mul_i32 s{sA}, s{sA}, 2592
    v_mul_u32_u24 v11, 2592, v9
    v_lshl_add_u32 v11, v10, 4, v11
    v_add_u32 v11, s{sA}, v11
    v_mov_b32 v12, {OOB}
    v_cmp_gt_u32 vcc, 144, v0
    v_mul_u32_u24 v13, 288, v9
    v_lshl_add_u32 v13, v10, 4, v13
    v_cndmask_b32 v11, v12, v11, vcc
    v_add_u32 v13, {FB}, v13
    s_cmp_lg_u32 s{sW}, 0
    s_cbranch_scc1 POLL_DONE
    s_mov_b32 s46, 0x40000
    POLL_LOOP:
    buffer_load_dword v{vChk}, v{vPoll}, s[{SWS}:{SWS+3}], 0 offen sc1
    s_waitcnt vmcnt(0)
    v_cmp_ne_u32 vcc, 1, v{vChk}
    s_sub_u32 s46, s46, 1
    s_cbranch_scc1 POLL_DONE
    s_cbranch_vccnz POLL_LOOP
    POLL_DONE:
    s_waitcnt vmcnt(0)
    s_barrier
    """)
    tsn(e, "flags")

def phase_c(e):
    PR, S, FE, FBr, J, T, OA = 16, 56, 72, 108, 126, 134, 144
    for js in range(9):
        e(f"buffer_load_dwordx4 v[{PR+4*js}:{PR+4*js+3}], v11, s[{SWS}:{SWS+3}], 0 offen offset:{js*288} sc1")
    e(f"""
    v_lshrrev_b32 v6, 1, v{vG_}
    v_mul_u32_u24 v6, 2432, v6
    v_and_b32 v7, 1, v{vG_}
    v_mul_u32_u24 v7, 1152, v7
    v_add_u32 v6, v6, v7
    v_mul_u32_u24 v7, 288, v{vRR}
    v_add_u32 v6, v6, v7
    v_add_u32 v6, {WOB}, v6
    v_lshl_add_u32 v7, v{vC4}, 4, v6
    v_lshl_add_u32 v8, v{vC4}, 3, v6
    v_add_u32 v8, 256, v8
    v_add_u32 v9, {16*2432}, v7
    v_add_u32 v10, {16*2432}, v8
    """)
    def wo(tau, kc, n):
        b = tau * 18 + kc * 4
        return f"a[{162+b}:{162+b+n-1}]" if tau < 5 else f"v[{184+b-90}:{184+b-90+n-1}]"
    def wo2(tau, kc, h):
        b = tau * 18 + kc * 4 + 2 * h
        return f"a[{162+b}:{162+b+1}]" if tau < 5 else f"v[{184+b-90}:{184+b-89}]"
    for tau in range(9):
        co, va, vh = ((tau >> 1) * 64 + (tau & 1) * 8, 7, 9) if tau < 8 else (0, 8, 10)
        for kc in range(4):
            e(f"ds_read_b64_tr_b16 {wo2(tau, kc, 0)}, v{va} offset:{kc*9728 + co}")
            e(f"ds_read_b64_tr_b16 {wo2(tau, kc, 1)}, v{va} offset:{kc*9728 + co + 4864}")
        e(f"ds_read_b64_tr_b16 {wo2(tau, 4, 0)}, v{vh} offset:{co}")
    e(f"""
    v_mov_b32 v52, {f2h(GC1)}
    v_mov_b32 v53, {f2h(GC2)}
    s_mov_b32 s46, 0x00003f80
    s_mov_b32 s47, 0x3f800000
    v_lshrrev_b32 v6, 3, v{vM}
    s_lshl_b32 s{sA}, s{sW}, 1
    v_add_u32 v6, s{sA}, v6
    v_mul_u32_u24 v6, 288, v6
    v_add_u32 v6, {FB}, v6
    v_lshl_add_u32 v14, v{vG_}, 4, v6
    v_lshl_add_u32 v15, v{vG_}, 3, v6
    v_mov_b32 v12, {f2h(TS)}
    s_waitcnt vmcnt(0)
    """)
    tsn(e, "pload")
    for q in range(4):
        e(f"v_lshlrev_b32 v{S+2*q}, 16, v{PR+q}")
        e(f"v_and_b32 v{S+2*q+1}, 0xffff0000, v{PR+q}")
    for js in range(1, 9):
        for q in range(4):
            e(f"v_dot2c_f32_bf16 v{S+2*q}, s46, v{PR+4*js+q}")
            e(f"v_dot2c_f32_bf16 v{S+2*q+1}, s47, v{PR+4*js+q}")
    e("s_nop 2")
    gelu(e, [S + i for i in range(8)], [S + 8 + i for i in range(8)], 52, 53)
    for q in range(4): e(f"v_cvt_pk_bf16_f32 v{S+8+q}, v{S+2*q}, v{S+2*q+1}")
    e("v_cmp_gt_u32 vcc, 144, v0")
    e("s_and_saveexec_b64 s[46:47], vcc")
    e("s_cbranch_execz K2_NOF")
    e(f"ds_write_b128 v13, v[{S+8}:{S+11}]")
    e("K2_NOF:")
    e("s_mov_b64 exec, s[46:47]")
    e("s_waitcnt lgkmcnt(0)")
    e("s_barrier")
    tsn(e, "fdone")
    for kc in range(4): e(f"ds_read_b128 v[{FBr+4*kc}:{FBr+4*kc+3}], v14 offset:{kc*64}")
    e(f"ds_read_b64 v[{FBr+16}:{FBr+17}], v15 offset:256")
    e(f"""
    s_mul_i32 s{sA}, s{sB}, 1000
    s_add_u32 s{sA}, s{sA}, s{sR}
    s_lshl_b32 s{sBt}, s{sW}, 1
    s_add_u32 s{sA}, s{sA}, s{sBt}
    s_mul_i32 s{sA}, s{sA}, 2304
    v_mul_u32_u24 v6, 288, v{vM}
    v_add_u32 v6, s{sA}, v6
    v_lshl_add_u32 v7, v{vG_}, 3, v6
    v_lshl_add_u32 v6, v{vG_}, 4, v6
    s_waitcnt lgkmcnt(0)
    """)
    def fe_tail(a): return f"{MF16} v[{FE+4*a}:{FE+4*a+3}], a[{a*18+16}:{a*18+17}], v[{FBr+16}:{FBr+17}], v[{FE+4*a}:{FE+4*a+3}]"
    def fe(s_):
        tiles = [2 * s_, 2 * s_ + 1] if s_ < 4 else [8]
        return [f"{MF32} v[{FE+4*a}:{FE+4*a+3}], a[{a*18+4*kc}:{a*18+4*kc+3}], v[{FBr+4*kc}:{FBr+4*kc+3}], v[{FE+4*a}:{FE+4*a+3}]"
                for kc in range(4) for a in tiles]
    def outm(k):
        r = []
        jb = J + 4 * (k & 1)
        for tau in range(9):
            cin = "0" if k == 0 else f"v[{OA+4*tau}:{OA+4*tau+3}]"
            if k < 4: r.append(f"{MF32} v[{OA+4*tau}:{OA+4*tau+3}], {wo(tau, k, 4)}, v[{jb}:{jb+3}], {cin}")
            else: r.append(f"{MF16} v[{OA+4*tau}:{OA+4*tau+3}], {wo(tau, 4, 2)}, v[{jb}:{jb+1}], {cin}")
        return r
    def tanh(k):
        n = 8 if k < 4 else 4
        src = FE + 8 * k
        jb = J + 4 * (k & 1)
        r = [f"v_mul_f32 v{T+i}, v12, v{src+i}" for i in range(n)]
        r += [f"v_exp_f32 v{T+i}, v{T+i}" for i in range(n)]
        r += [f"v_add_f32 v{T+i}, 1.0, v{T+i}" for i in range(n)]
        r += [f"v_rcp_f32 v{T+i}, v{T+i}" for i in range(n)]
        r += [f"v_fma_f32 v{T+i}, v{T+i}, -2.0, 1.0" for i in range(n)]
        r += [f"v_cvt_pk_bf16_f32 v{jb+i}, v{T+2*i}, v{T+2*i+1}" for i in range(n // 2)]
        return r
    for a in range(9): e(fe_tail(a))
    for m in fe(0): e(m)
    for st in range(1, 7):
        ms = (fe(st) if st <= 4 else []) + (outm(st - 2) if st >= 2 else [])
        vs = tanh(st - 1) if st - 1 <= 4 else []
        lead = 8 if st == 1 else (2 if st < 6 else 0)
        if st == 5: e("s_nop 7")
        if st == 6: e("s_nop 1")
        for m in ms[:lead]: e(m)
        rest = ms[lead:]
        k = 0
        for i, vi in enumerate(vs):
            e(vi)
            want = (i + 1) * len(rest) // len(vs)
            while k < want: e(rest[k]); k += 1
        while k < len(rest): e(rest[k]); k += 1
    tsn(e, "c3end")
    e("s_nop 7")
    for pi in range(4):
        A, B_ = OA + 8 * pi, OA + 8 * pi + 4
        d = 16 + 4 * pi
        e(f"v_cvt_pk_bf16_f32 v{d}, v{A}, v{A+1}")
        e(f"v_cvt_pk_bf16_f32 v{d+1}, v{A+2}, v{A+3}")
        e(f"v_cvt_pk_bf16_f32 v{d+2}, v{B_}, v{B_+1}")
        e(f"v_cvt_pk_bf16_f32 v{d+3}, v{B_+2}, v{B_+3}")
        e(f"buffer_store_dwordx4 v[{d}:{d+3}], v6, s[{SO}:{SO+3}], 0 offen offset:{pi*64}")
    A = OA + 32
    e(f"v_cvt_pk_bf16_f32 v32, v{A}, v{A+1}")
    e(f"v_cvt_pk_bf16_f32 v33, v{A+2}, v{A+3}")
    e(f"buffer_store_dwordx2 v[32:33], v7, s[{SO}:{SO+3}], 0 offen offset:256")

def aux(e):
    e("K1_AUX:")
    e("""
    s_load_dwordx2 s[40:41], s[0:1], 24
    s_load_dwordx2 s[42:43], s[0:1], 40
    v_lshrrev_b32 v6, 6, v0
    v_and_b32 v1, 63, v0
    """)
    e(f"v_readfirstlane_b32 s{sW}, v6")
    lane_parts(e, vL, vM, vG_, vRR, vC4)
    e(f"v_lshlrev_b32 v{vT16}, 4, v0")
    e(f"s_mov_b32 s{sK2}, -128")
    e("s_waitcnt lgkmcnt(0)")
    srd(e, 4, 40, 4608)
    srd(e, 8, 42, 41472)
    srd(e, SWS, 54, M_WS)
    srd(e, 12, 52, 256)
    e(f"s_lshl_b32 s{sW1024}, s{sW}, 10")
    for i in range(11): img_dma(e, 8, i, 0, 6, 7)
    e(f"v_mul_u32_u24 v6, 288, v{vM}")
    e(f"v_lshl_add_u32 v7, v{vG_}, 3, v6")
    e(f"v_lshl_add_u32 v6, v{vG_}, 4, v6")
    GB = 16
    for kc in range(4): e(f"buffer_load_dwordx4 v[{GB+4*kc}:{GB+4*kc+3}], v6, s[4:7], 0 offen offset:{kc*64}")
    e(f"buffer_load_dwordx2 v[{GB+16}:{GB+17}], v7, s[4:7], 0 offen offset:256")
    small_gemm_addr(e, vG_, vRR, vC4, sW, sA, 12, 13, 14, 15, 0)
    e("s_waitcnt vmcnt(0)")
    e("s_barrier")
    D = 40
    small_gemm(e, 12, 13, 14, 15, GB, 64, D)
    e(f"""
    v_mul_u32_u24 v7, 576, v{vM}
    v_lshl_add_u32 v7, v{vG_}, 4, v7
    v_add_u32 v7, {WS_GE}, v7
    s_lshl_b32 s{sA}, s{sW}, 6
    v_add_u32 v8, s{sA}, v7
    v_cmp_eq_u32 vcc, 0, v0
    v_mov_b32 v9, {OOB}
    v_mov_b32 v10, 248
    v_mov_b32 v11, 1
    v_cndmask_b32 v10, v9, v10, vcc
    s_nop 7
    """)
    for t in range(3):
        d = D + 4 * t
        e(f"v_cvt_pk_bf16_f32 v60, v{d}, v{d+1}")
        e(f"v_cvt_pk_bf16_f32 v61, v{d+2}, v{d+3}")
        e(f"v_lshlrev_b32 v{d}, 16, v60")
        e(f"v_and_b32 v{d+1}, 0xffff0000, v60")
        e(f"v_lshlrev_b32 v{d+2}, 16, v61")
        e(f"v_and_b32 v{d+3}, 0xffff0000, v61")
    e(f"buffer_store_dwordx4 v[{D}:{D+3}], v8, s[{SWS}:{SWS+3}], 0 offen sc1")
    e(f"buffer_store_dwordx4 v[{D+4}:{D+7}], v8, s[{SWS}:{SWS+3}], 0 offen offset:256 sc1")
    e(f"buffer_store_dwordx4 v[{D+8}:{D+11}], v7, s[{SWS}:{SWS+3}], 0 offen offset:512 sc1")
    e("s_waitcnt vmcnt(0)")
    e("s_barrier")
    e("buffer_store_dword v11, v10, s[12:15], 0 offen sc1")
    e("s_endpgm")

def gen_m1(e, name):
    e(f"{name}:")
    ts(e, 0)
    prologue(e); conv1(e); reduce_gelu(e); conv2_and_store(e); handoff(e); phase_c(e)
    ts_dump(e, 7, TSB, SWS, sW)
    e("s_endpgm")
    e("K1_DRAIN:")
    e("s_waitcnt vmcnt(0) lgkmcnt(0)")
    e("s_endpgm")
    aux(e)
    e("K1_END:")
    e("s_endpgm")
```

```python
import sys
from common import *
from m1b import gen_m1
NAME = "standalone__seq2seq_rnn_t_joint__speech"
ref = open(f"cdna_kernels/{NAME}.s.ref").read().split("\n")
hdr = [l for l in ref if l.startswith("; Kernarg") or l.startswith(";   offset")]
K1 = f"{NAME}_kernel"
out = "\n".join(hdr) + "\n; @launch grid=(256,1,1) block=(256,1,1) lds=163840\n"
out += '.amdgcn_target "amdgcn-amd-amdhsa--gfx950"\n.text\n'
e = Em(); gen_m1(e, K1)
out += f".globl {K1}\n.p2align 8\n.type {K1},@function\n" + e.text()
out += f""".section .rodata,"a"
.p2align 6
.amdhsa_kernel {K1}
  .amdhsa_next_free_vgpr 512
  .amdhsa_next_free_sgpr 96
  .amdhsa_accum_offset 256
  .amdhsa_group_segment_fixed_size 0
  .amdhsa_kernarg_size 80
  .amdhsa_user_sgpr_count 2
  .amdhsa_user_sgpr_kernarg_segment_ptr 1
  .amdhsa_system_sgpr_workgroup_id_x 1
.end_amdhsa_kernel
"""
open(sys.argv[1] if len(sys.argv) > 1 else f"cdna_kernels/{NAME}.s", "w").write(out)
```

```python
from common import *

import os
PFU = int(os.environ.get('PFU', 99))
RING, NSLOT, PRE = 102400, 10, int(os.environ.get("PRE", 10))
W2B, HB, WFB, WOB, FB = 4864, 143360, 78848, 0, 46080
WS_FL = WS_GE + 16384
M_WS = (8 << 20) if TSON else WS_FL + 28 * 128
OOB = "0x80000000"
SX, SW1, SW2, SWS, SDBG, SWF, SWO, SO = 4, 8, 12, 16, 40, 80, 84, 88
sG, sJ, sB, sGG, sW, sT0 = 28, 29, 30, 31, 32, 33
sA, sBt, sC, sRingW, sW1024, sR = 34, 35, 36, 37, 38, 39
sK1, sK2 = 92, 93
vL, vM, vG_, vRR, vC4 = 1, 2, 3, 4, 5
vFlagW, vDbg, vChk, vPoll, vExp, vOne, vT16 = 248, 249, 250, 251, 252, 253, 254
ACC, XA, XB, WF = 16, 56, 124, 192

def img_dma(e, srd_, i, base, t, t2, soff="0", two=False):
    e(f"v_add_u32 v{t}, {4096*i}, v{vT16}")
    e(f"v_mul_u32_u24 v{t2}, 27595, v{t}")
    if two:
        e(f"v_lshrrev_b32 v{t2+1}, 27, v{t2}")
    e(f"v_lshrrev_b32 v{t2}, 26, v{t2}")
    if two:
        e(f"v_mad_u32_u24 v{t}, v{t2+1}, s{sK1}, v{t}")
    e(f"s_add_u32 m0, s{sW1024}, {base + 4096*i}")
    e(f"v_mad_i32_i24 v{t}, v{t2}, s{sK2}, v{t}")
    e(f"buffer_load_dwordx4 v{t}, s[{srd_}:{srd_+3}], {soff} offen lds")

def prologue(e):
    e("""
    s_load_dwordx4 s[20:23], s[0:1], 0
    s_load_dwordx4 s[52:55], s[0:1], 64
    s_load_dwordx2 s[24:25], s[0:1], 16
    s_load_dwordx2 s[44:45], s[0:1], 32
    s_load_dwordx4 s[48:51], s[0:1], 48
    s_cmp_ge_u32 s2, 256
    s_cbranch_scc1 K1_END
    """)
    e(f"""
    s_and_b32 s{sA}, s2, 7
    s_lshr_b32 s{sBt}, s2, 3
    s_cmp_ge_u32 s{sBt}, 27
    s_cbranch_scc1 K1_TAILMAP
    s_mul_i32 s{sC}, s{sBt}, 57
    s_lshr_b32 s{sC}, s{sC}, 9
    s_mul_i32 s{sG}, s{sA}, 3
    s_add_u32 s{sG}, s{sG}, s{sC}
    s_mul_i32 s{sC}, s{sC}, 9
    s_sub_u32 s{sJ}, s{sBt}, s{sC}
    s_branch K1_MAPPED
    K1_TAILMAP:
    s_and_b32 s{sC}, s{sA}, 1
    s_mul_i32 s{sC}, s{sC}, 5
    s_add_u32 s{sC}, s{sC}, s{sBt}
    s_sub_u32 s{sJ}, s{sC}, 27
    s_lshr_b32 s{sG}, s{sA}, 1
    s_cmp_lt_u32 s{sJ}, 9
    s_cbranch_scc1 K1_TAILOK
    s_cmp_eq_u32 s{sG}, 0
    s_cbranch_scc1 K1_AUX
    s_branch K1_END
    K1_TAILOK:
    s_add_u32 s{sG}, s{sG}, 24
    K1_MAPPED:
    s_cmp_ge_u32 s{sG}, 14
    s_cselect_b32 s{sB}, 1, 0
    s_mul_i32 s{sC}, s{sB}, 14
    s_sub_u32 s{sGG}, s{sG}, s{sC}
    s_mul_i32 s{sT0}, s{sGG}, 72
    v_lshrrev_b32 v6, 6, v0
    v_and_b32 v{vL}, 63, v0
    v_readfirstlane_b32 s{sW}, v6
    """)
    lane_parts(e, vL, vM, vG_, vRR, vC4)
    e(f"""
    s_lshl_b32 s{sA}, s{sG}, 7
    s_add_u32 s{sA}, s{sA}, {WS_FL}
    s_lshl_b32 s{sBt}, s{sJ}, 2
    s_add_u32 s{sBt}, s{sBt}, s{sA}
    v_min_u32 v6, 8, v{vL}
    v_lshl_add_u32 v{vPoll}, v6, 2, s{sA}
    v_cmp_eq_u32 vcc, 0, v0
    v_mov_b32 v6, {OOB}
    v_mov_b32 v7, s{sBt}
    s_lshl_b32 s{sA}, s{sG}, 3
    v_mov_b32 v8, s{sA}
    v_cndmask_b32 v{vFlagW}, v6, v7, vcc
    v_cndmask_b32 v{vDbg}, v6, v8, vcc
    v_mov_b32 v{vOne}, 0
    v_lshlrev_b32 v{vT16}, 4, v0
    s_lshl_b32 s{sW1024}, s{sW}, 10
    s_mul_i32 s{sC}, s{sB}, 1152000
    s_waitcnt lgkmcnt(0)
    s_add_u32 s{SX}, s20, s{sC}
    s_addc_u32 s{SX+1}, s21, 0
    s_and_b32 s{SX+1}, s{SX+1}, 0xffff
    s_mov_b32 s{SX+2}, 1152000
    s_mov_b32 s{SX+3}, 0x20000
    """)
    srd(e, SWS, 54, M_WS)
    e(f"""
    s_lshl_b32 s{sC}, s{sT0}, 1
    s_sub_u32 s{sC}, s{sC}, 12
    s_mul_i32 s{sC}, s{sC}, 576
    """)
    e(f"buffer_store_dword v{vOne}, v{vFlagW}, s[{SWS}:{SWS+3}], 0 offen sc1")
    for i in range(25):
        t, t2 = 6 + 2 * (i & 1), 7 + 2 * (i & 1)
        e(f"v_add_u32 v{t}, {256*i}, v0")
        e(f"v_mul_u32_u24 v{t2}, 113360, v{t}")
        e(f"v_lshrrev_b32 v{t2}, 22, v{t2}")
        e(f"v_sub_u32 v{t}, v{t}, v{t2}")
        e(f"s_add_u32 m0, s{sW1024}, {4096*i}")
        e(f"v_lshl_add_u32 v{t}, v{t}, 4, s{sC}")
        e(f"buffer_load_dwordx4 v{t}, s[{SX}:{SX+3}], 0 offen lds")
    tsn(e, "xissued")
    srd(e, SW1, 22, 622080)
    srd(e, SW2, 24, 622080)
    srd(e, SDBG, 52, 256)
    srd(e, SWF, 44, 41472)
    srd(e, SWO, 48, 41472)
    srd(e, SO, 50, 4608000)
    e(f"s_mov_b32 s{sK1}, 36864")
    e(f"s_mov_b32 s{sK2}, -128")

def conv1(e):
    vP0a, vP0b, vPn, vP8 = 10, 11, 12, 13
    vK, vT = 6, 7
    e(f"""
    v_lshrrev_b32 v{vT}, 1, v{vL}
    v_and_b32 v{vK}, 0x13, v{vT}
    v_and_b32 v8, 4, v{vT}
    v_lshlrev_b32 v8, 1, v8
    v_or_b32 v{vK}, v{vK}, v8
    v_and_b32 v8, 8, v{vT}
    v_lshrrev_b32 v8, 1, v8
    v_or_b32 v{vK}, v{vK}, v8
    v_and_b32 v8, 1, v{vL}
    v_lshlrev_b32 v8, 4, v8
    s_lshl_b32 s{sC}, s{sJ}, 5
    v_add_u32 v8, s{sC}, v8
    s_lshl_b32 s{sA}, s{sW}, 6
    v_add_u32 v9, s{sA}, v{vK}
    v_mul_u32_u24 v{vPn}, 288, v9
    v_add_u32 v{vPn}, v{vPn}, v8
    v_subrev_u32 v{vP0a}, {144*288}, v{vPn}
    v_subrev_u32 v{vP0b}, {112*288}, v{vPn}
    v_add_u32 v{vPn}, {144*288}, v{vPn}
    s_mul_i32 s{sA}, s{sW}, 576
    s_add_u32 s{sA}, s{sA}, 112
    v_add_u32 v9, s{sA}, v{vK}
    v_mul_u32_u24 v{vP8}, 288, v9
    v_add_u32 v{vP8}, v{vP8}, v8
    s_mul_i32 s{sRingW}, s{sW}, {NSLOT*1024}
    s_add_u32 s{sRingW}, s{sRingW}, {RING}
    """)
    units = [(0, P) for P in range(8)] + [(1, P) for P in range(8)] + [(2, 0), (2, 1)]
    NU = len(units)
    vm = []
    def issue_unit(u):
        c, P = units[u]
        e(f"s_add_u32 m0, s{sRingW}, {(u % NSLOT)*1024}")
        if c < 2 and P == 0:
            e("s_nop 0")
            e(f"buffer_load_dwordx4 v{vP0a if c == 0 else vP0b}, s[{SW1}:{SW1+3}], 0 offen lds")
        elif c < 2:
            e(f"s_mov_b32 s{sA}, {(288*(P-1) + 32*c) * 288}")
            e(f"buffer_load_dwordx4 v{vPn}, s[{SW1}:{SW1+3}], s{sA} offen lds")
        else:
            e(f"s_mov_b32 s{sA}, {P*288*288}")
            e(f"buffer_load_dwordx4 v{vP8}, s[{SW1}:{SW1+3}], s{sA} offen lds")
        vm.append(("u", u))
    def wait_unit(n):
        e(f"s_waitcnt vmcnt({len(vm) - 1 - vm.index(('u', n))})")
    for u in range(PRE): issue_unit(u)
    vXa, vX8, vWr = 14, 15, 9
    e(f"""
    v_mul_u32_u24 v{vXa}, 5920, v{vM}
    v_lshl_add_u32 v{vXa}, v{vG_}, 4, v{vXa}
    s_mul_i32 s{sA}, s{sW}, 1184
    s_add_u32 s{sA}, s{sA}, 512
    v_add_u32 v{vX8}, s{sA}, v{vXa}
    s_lshl_b32 s{sA}, s{sW}, 7
    v_add_u32 v{vXa}, s{sA}, v{vXa}
    v_lshrrev_b32 v6, 1, v{vG_}
    v_lshlrev_b32 v6, 4, v6
    v_and_b32 v7, 1, v{vG_}
    v_lshl_add_u32 v6, v7, 2, v6
    v_add_u32 v6, v6, v{vRR}
    v_lshlrev_b32 v6, 5, v6
    v_lshl_add_u32 v6, v{vC4}, 3, v6
    v_add_u32 v{vWr}, s{sRingW}, v6
    v_mov_b32 v{vOne}, 1
    s_mul_i32 s{sBt}, s{sJ}, 4608
    """)
    tsn(e, "issued")
    e(f"s_waitcnt vmcnt({PRE})")
    e("s_barrier")
    tsn(e, "bar1")
    def xread(dst, J, c):
        if c < 2: e(f"ds_read_b128 v[{dst+4*J}:{dst+4*J+3}], v{vXa} offset:{J*592 + c*64}")
        else: e(f"ds_read_b128 v[{dst+4*J}:{dst+4*J+3}], v{vX8} offset:{J*592}")
    def wread(u):
        d = WF + 4 * (u & 1)
        e(f"ds_read_b64_tr_b16 v[{d}:{d+1}], v{vWr} offset:{(u % NSLOT)*1024}")
        e(f"ds_read_b64_tr_b16 v[{d+2}:{d+3}], v{vWr} offset:{(u % NSLOT)*1024+256}")
    for J in range(10): xread(XA, J, 0)
    e(f"buffer_atomic_add v{vOne}, v{vDbg}, s[{SDBG}:{SDBG+3}], 0 offen sc1")
    vm.append(("a", 0))
    wait_unit(0)
    wread(0)
    for J in range(10, 17): xread(XA, J, 0)
    w2i = 0
    for u, (c, P) in enumerate(units):
        if u == 0: e("s_waitcnt lgkmcnt(7)")
        elif u == 1: e("s_waitcnt lgkmcnt(0)")
        else: e("s_waitcnt lgkmcnt(0)")
        tsn(e, f"u{u}")
        if u == PFU:
            e(f"""
            s_mul_i32 s{sA}, s{sW}, {4*41472}
            s_add_u32 s{sA}, s{sA}, s{sBt}
            v_lshlrev_b32 v200, 7, v{vL}
            v_add_u32 v200, s{sA}, v200
            v_mov_b32 v201, {OOB}
            v_cmp_gt_u32 vcc, 36, v{vL}
            s_nop 0
            v_cndmask_b32 v200, v201, v200, vcc
            """)
            for i in range(4):
                e(f"v_add_u32 v{201+i}, {i*41472}, v200")
                e(f"buffer_load_dword v207, v{201+i}, s[{SW2}:{SW2+3}], 0 offen")
                vm.append(("pf", i))
        if u == 10: e("s_barrier")
        if u + PRE < NU: issue_unit(u + PRE)
        elif w2i < 18 and u >= 10:
            for k in range(3):
                img_dma(e, SW2, w2i, W2B, 200 + 4 * (k & 1), 201 + 4 * (k & 1), f"s{sBt}", two=True)
                vm.append(("w2", w2i)); w2i += 1
        if u + 1 < NU:
            wait_unit(u + 1)
            wread(u + 1)
        if c == 0:
            for J in [j for j in range(17) if j * 8 // 17 == P]: xread(XB, J, 1)
        elif u in (8, 9):
            for J in (range(6) if u == 8 else range(6, 11)): xread(XA, J, 2)
        X = XB if c == 1 else XA
        d = WF + 4 * (u & 1)
        for jt in range(10):
            cin = "0" if u == 0 else f"v[{ACC+4*jt}:{ACC+4*jt+3}]"
            e(f"{MF32} v[{ACC+4*jt}:{ACC+4*jt+3}], v[{d}:{d+3}], v[{X+4*(jt+P)}:{X+4*(jt+P)+3}], {cin}")
    assert w2i == 18
    tsn(e, "c1end")

def reduce_gelu(e):
    e(f"""
    v_and_b32 v6, 1, v{vL}
    s_lshl_b32 s{sA}, s{sG}, 3
    v_mov_b32 v7, s{sA}
    v_mov_b32 v8, 248
    v_cmp_eq_u32 vcc, 0, v6
    v_lshlrev_b32 v6, 4, v{vL}
    v_add_u32 v9, s{sRingW}, v6
    v_cndmask_b32 v{vDbg}, v8, v7, vcc
    v_mov_b32 v7, 9
    v_mov_b32 v8, 1
    v_cndmask_b32 v{vExp}, v8, v7, vcc
    """)
    e(f"buffer_load_dword v{vChk}, v{vDbg}, s[{SDBG}:{SDBG+3}], 0 offen sc1")
    for jt in range(10):
        e(f"ds_write_b128 v9, v[{ACC+4*jt}:{ACC+4*jt+3}] offset:{jt*1024}")
    e(f"""
    v_add_u32 v8, {RING}, v6
    v_add_u32 v8, s{sW1024}, v8
    s_lshr_b32 s{sA}, s{sW}, 1
    s_lshl_b32 s{sA}, s{sA}, 10
    s_and_b32 s{sC}, s{sW}, 1
    s_lshl_b32 s{sC}, s{sC}, 3
    s_add_u32 s{sA}, s{sA}, s{sC}
    s_add_u32 s{sA}, s{sA}, {RING + 8*1024}
    v_add_u32 v9, s{sA}, v6
    v_mov_b32 v10, {f2h(GC1)}
    v_mov_b32 v11, {f2h(GC2)}
    v_mul_u32_u24 v12, 10, v{vM}
    s_lshl_b32 s{sA}, s{sT0}, 1
    s_sub_u32 s{sA}, s{sA}, 8
    s_movk_i32 s46, 2000
    """)
    for k in range(3):
        if k < 2: e(f"s_add_u32 s47, s{sW}, {4*k}")
        else:
            e(f"s_lshr_b32 s47, s{sW}, 1")
            e(f"s_add_u32 s47, s47, 8")
        e(f"v_add_u32 v13, s47, v12")
        e(f"v_add_u32 v6, s{sA}, v13")
        e(f"v_cmp_gt_u32 s[{26 if k == 0 else 94 if k == 1 else 56}:{27 if k == 0 else 95 if k == 1 else 57}], s46, v6")
        e("v_lshrrev_b32 v7, 1, v13")
        e("v_mul_u32_u24 v7, 96, v7")
        e("v_and_b32 v13, 1, v13")
        e("v_lshl_add_u32 v7, v13, 5, v7")
        e(f"v_lshl_add_u32 v7, v{vG_}, 3, v7")
        e(f"v_add_u32 v{200+k}, {HB}, v7")
    e(f"s_lshr_b32 s47, s{sC}, 1")
    e(f"v_add_u32 v202, s47, v202")
    e(f"""
    v_lshrrev_b32 v14, 1, v{vG_}
    v_mul_u32_u24 v14, 4864, v14
    v_and_b32 v15, 1, v{vG_}
    v_mul_u32_u24 v15, 2432, v15
    v_add_u32 v14, v14, v15
    v_mul_u32_u24 v15, 288, v{vRR}
    v_add_u32 v14, v14, v15
    v_lshl_add_u32 v203, v{vC4}, 3, v14
    v_add_u32 v203, 256, v203
    v_add_u32 v204, 38912, v203
    v_lshl_add_u32 v205, v{vC4}, 3, v14
    s_lshl_b32 s47, s{sW}, 6
    v_add_u32 v205, s47, v205
    v_add_u32 v206, 38912, v205
    """)
    rq = []
    def w2read(P, tile):
        d = 56 + (tile * 8 + P) * 4
        base = (P % 4) * 9728
        if tile < 2: va, off = (205 if P < 4 else 206), base + tile * 32
        else: va, off = (203 if P < 4 else 204), base
        rq.append(f"ds_read_b64_tr_b16 v[{d}:{d+1}], v{va} offset:{off}")
        rq.append(f"ds_read_b64_tr_b16 v[{d+2}:{d+3}], v{va} offset:{off+1152}")
    e("s_waitcnt vmcnt(1) lgkmcnt(0)")
    e("s_barrier")
    tsn(e, "redbar")
    R = 152
    for k in range(2):
        for src in range(4):
            d = R + 16 * k + 4 * src
            e(f"ds_read_b128 v[{d}:{d+3}], v8 offset:{src*NSLOT*1024 + k*4096}")
    for src in range(4):
        d = R + 32 + 2 * src
        e(f"ds_read_b64 v[{d}:{d+1}], v9 offset:{src*NSLOT*1024}")
    for i in range(5): img_dma(e, SWF, i, WFB, 14, 15)
    masks = ["s[26:27]", "s[94:95]", "s[56:57]"]
    for tile in range(2):
        for P in range(8): w2read(P, tile)
    on, cnt = [False], [0]
    EV = int(os.environ.get("EV", 3))
    def ei(txt):
        e(txt)
        if on[0] and txt.strip().startswith("v_"):
            cnt[0] += 1
            if cnt[0] % EV == 0 and rq: e(rq.pop(0))
    for k in range(3):
        n = 4 if k < 2 else 2
        d = R + 16 * k
        if k == 0: ei("s_waitcnt lgkmcnt(8)")
        for r in range(n): ei(f"v_add_f32 v{d+r}, v{d+r}, v{d+n+r}")
        for r in range(n): ei(f"v_add_f32 v{d+2*n+r}, v{d+2*n+r}, v{d+3*n+r}")
        for r in range(n): ei(f"v_add_f32 v{d+r}, v{d+r}, v{d+2*n+r}")
        if k == 0: ei("s_waitcnt lgkmcnt(0)"); on[0] = True
        gelu(ei, [d + r for r in range(n)], [d + n + r for r in range(n)], 10, 11)
        for r in range(n // 2): ei(f"v_cvt_pk_bf16_f32 v{d+4+r}, v{d+2*r}, v{d+2*r+1}")
        ei("s_nop 0")
        for r in range(n // 2): ei(f"v_cndmask_b32 v{d+4+r}, 0, v{d+4+r}, {masks[k]}")
        if k < 2: ei(f"ds_write_b64 v{200+k}, v[{d+4}:{d+5}]")
        else: ei(f"ds_write_b32 v{200+k}, v{d+4}")
    while rq: e(rq.pop(0))
    tsn(e, "gelu")
```

```python
import os
from common import *
from m1a import *
from k1 import small_gemm_addr, small_gemm

def conv2_and_store(e):
    vH = 6
    e(f"""
    v_mul_u32_u24 v{vH}, 480, v{vM}
    v_lshl_add_u32 v{vH}, v{vG_}, 4, v{vH}
    v_add_u32 v{vH}, {HB}, v{vH}
    s_mul_i32 s{sA}, s{sW}, 96
    v_add_u32 v15, s{sA}, v{vH}
    v_mov_b32 v53, v203
    v_mov_b32 v54, v204
    """)
    e("s_waitcnt vmcnt(5) lgkmcnt(0)")
    e("s_barrier")
    tsn(e, "bar3")
    W2F, HF, AC2 = 56, 152, 200
    def hread(J): e(f"ds_read_b128 v[{HF+4*J}:{HF+4*J+3}], v{vH} offset:{J*96}")
    def hwread(P): e(f"ds_read_b128 a[{4*P}:{4*P+3}], v15 offset:{P*96}")
    def acc(tile, k): return AC2 + 4 * (tile * 5 + k) if tile < 2 else AC2 + 40 + 4 * k
    for J in (0, 4, 1, 5, 2, 6, 3, 7, 8, 9, 10, 11): hread(J)
    e(f"v_cmp_lt_u32 vcc, 31, v{vL}")
    for tile in range(2):
        d = W2F + tile * 32
        for r in range(4): e(f"v_cndmask_b32 v{d+r}, 0, v{d+r}, vcc")
    q = []
    def Q(txt): q.extend(x.strip() for x in txt.strip().split("\n") if x.strip())
    for i in range(5, 11): img_dma(Q, SWF, i, WFB, 9, 10)
    Q(f"""
    s_mul_i32 s{sA}, s{sB}, 1008
    s_add_u32 s{sA}, s{sA}, s{sT0}
    s_mul_i32 s{sA}, s{sA}, 2592
    s_mul_i32 s{sBt}, s{sJ}, 288
    s_add_u32 s{sA}, s{sA}, s{sBt}
    v_mul_u32_u24 v14, 5, v{vM}
    v_mul_u32_u24 v50, {5*2592}, v{vM}
    v_add_u32 v50, s{sA}, v50
    v_and_b32 v48, 1, v{vG_}
    v_lshl_add_u32 v48, v48, 5, v50
    v_lshrrev_b32 v51, 1, v{vG_}
    v_lshl_add_u32 v48, v51, 4, v48
    s_lshl_b32 s{sBt}, s{sW}, 6
    v_add_u32 v48, s{sBt}, v48
    v_lshl_add_u32 v49, v{vG_}, 3, v50
    v_add_u32 v49, 256, v49
    v_mov_b32 v50, {OOB}
    """)
    for jt in range(5):
        Q(f"v_add_u32 v51, {jt}, v14")
        Q(f"v_cmp_gt_u32 vcc, 72, v51")
        Q(f"v_add_u32 v52, {jt*2592}, v48")
        Q("s_nop 0")
        Q(f"v_cndmask_b32 v{16+jt}, v50, v52, vcc")
    Q(f"""
    v_add_u32 v51, s{sW}, v14
    v_cmp_gt_u32 vcc, 72, v51
    s_mul_i32 s{sBt}, s{sW}, 2592
    v_add_u32 v52, s{sBt}, v49
    v_add_u32 v51, 4, v14
    v_cndmask_b32 v21, v50, v52, vcc
    v_cmp_gt_u32 vcc, 72, v51
    v_add_u32 v52, {4*2592}, v49
    s_cmp_eq_u32 s{sW}, 0
    s_cselect_b64 s[46:47], -1, 0
    s_and_b64 vcc, vcc, s[46:47]
    v_cndmask_b32 v22, v50, v52, vcc
    """)
    def cvt_store(r):
        if r in ("T0", "T1"):
            for k in [int(r[1])]:
                A = acc(2, k); d = 44 + 2 * k
                Q(f"v_cvt_pk_bf16_f32 v{d}, v{A}, v{A+1}")
                Q(f"v_cvt_pk_bf16_f32 v{d+1}, v{A+2}, v{A+3}")
                Q(f"buffer_store_dwordx2 v[{d}:{d+1}], v{21+k}, s[{SWS}:{SWS+3}], 0 offen sc1")
        else:
            A, B_ = acc(0, r), acc(1, r); d = 24 + 4 * r
            Q(f"v_cvt_pk_bf16_f32 v{d}, v{A}, v{A+1}")
            Q(f"v_cvt_pk_bf16_f32 v{d+2}, v{B_}, v{B_+1}")
            Q(f"v_cvt_pk_bf16_f32 v{d+1}, v{A+2}, v{A+3}")
            Q(f"v_cvt_pk_bf16_f32 v{d+3}, v{B_+2}, v{B_+3}")
            Q("s_nop 1")
            Q(f"v_permlane16_swap_b32 v{d}, v{d+2}")
            Q(f"v_permlane16_swap_b32 v{d+1}, v{d+3}")
            Q("s_nop 1")
            Q(f"buffer_store_dwordx4 v[{d}:{d+3}], v{16+r}, s[{SWS}:{SWS+3}], 0 offen sc1")
    def fill(n):
        while q and n > 0:
            x = q.pop(0)
            e(x)
            if x.startswith("v_") or x.startswith("buffer"): n -= 1
    NF = int(os.environ.get("NF", 2))
    def w2t2(P):
        d = W2F + (16 + P) * 4
        va, off = (53 if P < 4 else 54), (P % 4) * 9728
        e(f"ds_read_b64_tr_b16 v[{d}:{d+1}], v{va} offset:{off}")
        e(f"ds_read_b64_tr_b16 v[{d+2}:{d+3}], v{va} offset:{off+1152}")
    def mf(ch, P):
        tile, k = ch
        wf = W2F + (tile * 8 + P) * 4
        ac = acc(tile, k)
        if tile == 2 and k == 0: src = f"a[{4*P}:{4*P+3}]"
        else:
            J = (4 if tile == 2 else k) + P
            src = f"v[{HF+4*J}:{HF+4*J+3}]"
        cin = "0" if P == 0 else f"v[{ac}:{ac+3}]"
        e(f"{MF32} v[{ac}:{ac+3}], v[{wf}:{wf+3}], {src}, {cin}")
    srs = [[(0, 0), (1, 0), (0, 4)], [(0, 1), (1, 1), (1, 4)], [(0, 2), (1, 2), (2, 1)], [(0, 3), (1, 3), (2, 0)]]
    done = [[0], [1, 4], [2, "T1"], [3, "T0"]]
    for ri, sr in enumerate(srs):
        if ri == 3: e("s_waitcnt lgkmcnt(0)")
        if ri == 2:
            e("s_waitcnt lgkmcnt(15)")
            e(f"v_cmp_lt_u32 vcc, 31, v{vL}")
            for r in range(4): e(f"v_cndmask_b32 v{W2F+64+r}, 0, v{W2F+64+r}, vcc")
        for P in range(8):
            if ri == 0: e(f"s_waitcnt lgkmcnt({[10, 8, 6, 4, 3, 2, 1, 0][P]})")
            if P == 0: tsn(e, f"sr{ri}")
            if ri == 1:
                w2t2(P); hwread(P)
            if ri == 2 and P > 0: e(f"s_waitcnt lgkmcnt({min(15, 3 * (7 - P) + 1)})")
            if P == 3 and ri > 0:
                for r in done[ri - 1]: cvt_store(r)
            for ch in sr:
                mf(ch, P)
                fill(NF)
    tsn(e, "c2end")
    fill(1000)
    e("s_nop 7")
    for r in done[3]: cvt_store(r)
    fill(1000)
    tsn(e, "stored")

def handoff(e):
    e(f"""
    s_cmp_lg_u32 s{sW}, 0
    s_cbranch_scc1 CHK_DONE
    s_mov_b32 s46, 0x40000
    CHK_LOOP:
    v_cmp_ne_u32 vcc, v{vChk}, v{vExp}
    s_sub_u32 s46, s46, 1
    s_cbranch_scc1 CHK_DONE
    s_cbranch_vccz CHK_DONE
    buffer_load_dword v{vChk}, v{vDbg}, s[{SDBG}:{SDBG+3}], 0 offen sc1
    s_waitcnt vmcnt(0)
    s_branch CHK_LOOP
    CHK_DONE:
    s_waitcnt vmcnt(7)
    s_barrier
    """)
    FE = 72
    e(f"""
    v_and_b32 v6, 7, v{vM}
    v_mul_u32_u24 v6, 576, v6
    v_lshl_add_u32 v6, v{vG_}, 4, v6
    s_mul_i32 s{sA}, s{sB}, 4608
    s_add_u32 s{sA}, s{sA}, {WS_GE}
    """)
    for a in range(9):
        e(f"buffer_load_dwordx4 v[{FE+4*a}:{FE+4*a+3}], v6, s[{SWS}:{SWS+3}], s{sA} offen offset:{64*a} sc1")
    for i in range(11): img_dma(e, SWO, i, WOB, 9, 10)
    e(f"""
    v_mul_u32_u24 v6, 288, v{vRR}
    v_lshl_add_u32 v6, v{vC4}, 3, v6
    v_mul_u32_u24 v7, 2432, v{vG_}
    v_add_u32 v7, v7, v6
    v_add_u32 v7, {WFB}, v7
    v_lshrrev_b32 v8, 1, v{vG_}
    v_mul_u32_u24 v8, 2432, v8
    v_add_u32 v6, v6, v8
    v_and_b32 v8, 1, v{vG_}
    v_mul_u32_u24 v8, 1152, v8
    v_add_u32 v6, v6, v8
    v_add_u32 v8, {WFB + 16*2432}, v6
    """)
    def wfread(a):
        for kc in range(4):
            d = a * 18 + kc * 4
            e(f"ds_read_b64_tr_b16 a[{d}:{d+1}], v7 offset:{kc*9728 + 32*a}")
            e(f"ds_read_b64_tr_b16 a[{d+2}:{d+3}], v7 offset:{kc*9728 + 32*a + 1152}")
        e(f"ds_read_b64_tr_b16 a[{a*18+16}:{a*18+17}], v8 offset:{32*a}")
    for a in range(5): wfread(a)
    e("s_waitcnt vmcnt(20)")
    e("s_barrier")
    tsn(e, "stdone")
    e(f"buffer_store_dword v{vOne}, v{vFlagW}, s[{SWS}:{SWS+3}], 0 offen sc1")
    e(f"""
    s_lshl_b32 s{sR}, s{sJ}, 3
    s_add_u32 s{sR}, s{sR}, s{sT0}
    s_cmp_ge_u32 s{sR}, 1000
    s_cbranch_scc1 K1_DRAIN
    """)
    for a in range(5, 9): wfread(a)
    e(f"""
    v_mul_u32_u24 v9, 3641, v0
    v_lshrrev_b32 v9, 16, v9
    v_mul_u32_u24 v10, 18, v9
    v_sub_u32 v10, v0, v10
    s_mul_i32 s{sA}, s{sB}, 1008
    s_add_u32 s{sA}, s{sA}, s{sR}
    s_mul_i32 s{sA}, s{sA}, 2592
    v_mul_u32_u24 v11, 2592, v9
    v_lshl_add_u32 v11, v10, 4, v11
    v_add_u32 v11, s{sA}, v11
    v_mov_b32 v12, {OOB}
    v_cmp_gt_u32 vcc, 144, v0
    v_mul_u32_u24 v13, 288, v9
    v_lshl_add_u32 v13, v10, 4, v13
    v_cndmask_b32 v11, v12, v11, vcc
    v_add_u32 v13, {FB}, v13
    s_cmp_lg_u32 s{sW}, 0
    s_cbranch_scc1 POLL_DONE
    s_mov_b32 s46, 0x40000
    POLL_LOOP:
    buffer_load_dword v{vChk}, v{vPoll}, s[{SWS}:{SWS+3}], 0 offen sc1
    s_waitcnt vmcnt(0)
    v_cmp_ne_u32 vcc, 1, v{vChk}
    s_sub_u32 s46, s46, 1
    s_cbranch_scc1 POLL_DONE
    s_cbranch_vccnz POLL_LOOP
    POLL_DONE:
    s_waitcnt vmcnt(0)
    s_barrier
    """)
    tsn(e, "flags")

def phase_c(e):
    PR, S, FE, FBr, J, T, OA = 16, 56, 72, 108, 126, 134, 144
    for js in range(9):
        e(f"buffer_load_dwordx4 v[{PR+4*js}:{PR+4*js+3}], v11, s[{SWS}:{SWS+3}], 0 offen offset:{js*288} sc1")
    e(f"""
    v_lshrrev_b32 v6, 1, v{vG_}
    v_mul_u32_u24 v6, 2432, v6
    v_and_b32 v7, 1, v{vG_}
    v_mul_u32_u24 v7, 1152, v7
    v_add_u32 v6, v6, v7
    v_mul_u32_u24 v7, 288, v{vRR}
    v_add_u32 v6, v6, v7
    v_add_u32 v6, {WOB}, v6
    v_lshl_add_u32 v7, v{vC4}, 4, v6
    v_lshl_add_u32 v8, v{vC4}, 3, v6
    v_add_u32 v8, 256, v8
    v_add_u32 v9, {16*2432}, v7
    v_add_u32 v10, {16*2432}, v8
    """)
    def wo(tau, kc, n):
        b = tau * 18 + kc * 4
        return f"a[{162+b}:{162+b+n-1}]" if tau < 5 else f"v[{184+b-90}:{184+b-90+n-1}]"
    def wo2(tau, kc, h):
        b = tau * 18 + kc * 4 + 2 * h
        return f"a[{162+b}:{162+b+1}]" if tau < 5 else f"v[{184+b-90}:{184+b-89}]"
    for tau in range(9):
        co, va, vh = ((tau >> 1) * 64 + (tau & 1) * 8, 7, 9) if tau < 8 else (0, 8, 10)
        for kc in range(4):
            e(f"ds_read_b64_tr_b16 {wo2(tau, kc, 0)}, v{va} offset:{kc*9728 + co}")
            e(f"ds_read_b64_tr_b16 {wo2(tau, kc, 1)}, v{va} offset:{kc*9728 + co + 4864}")
        e(f"ds_read_b64_tr_b16 {wo2(tau, 4, 0)}, v{vh} offset:{co}")
    e(f"""
    v_mov_b32 v52, {f2h(GC1)}
    v_mov_b32 v53, {f2h(GC2)}
    s_mov_b32 s46, 0x00003f80
    s_mov_b32 s47, 0x3f800000
    v_lshrrev_b32 v6, 3, v{vM}
    s_lshl_b32 s{sA}, s{sW}, 1
    v_add_u32 v6, s{sA}, v6
    v_mul_u32_u24 v6, 288, v6
    v_add_u32 v6, {FB}, v6
    v_lshl_add_u32 v14, v{vG_}, 4, v6
    v_lshl_add_u32 v15, v{vG_}, 3, v6
    v_mov_b32 v12, {f2h(TS)}
    s_waitcnt vmcnt(0)
    """)
    tsn(e, "pload")
    for q in range(4):
        e(f"v_lshlrev_b32 v{S+2*q}, 16, v{PR+q}")
        e(f"v_and_b32 v{S+2*q+1}, 0xffff0000, v{PR+q}")
    for js in range(1, 9):
        for q in range(4):
            e(f"v_dot2c_f32_bf16 v{S+2*q}, s46, v{PR+4*js+q}")
            e(f"v_dot2c_f32_bf16 v{S+2*q+1}, s47, v{PR+4*js+q}")
    e("s_nop 2")
    gelu(e, [S + i for i in range(8)], [S + 8 + i for i in range(8)], 52, 53)
    for q in range(4): e(f"v_cvt_pk_bf16_f32 v{S+8+q}, v{S+2*q}, v{S+2*q+1}")
    e("v_cmp_gt_u32 vcc, 144, v0")
    e("s_and_saveexec_b64 s[46:47], vcc")
    e("s_cbranch_execz K2_NOF")
    e(f"ds_write_b128 v13, v[{S+8}:{S+11}]")
    e("K2_NOF:")
    e("s_mov_b64 exec, s[46:47]")
    e("s_waitcnt lgkmcnt(0)")
    e("s_barrier")
    tsn(e, "fdone")
    for kc in range(4): e(f"ds_read_b128 v[{FBr+4*kc}:{FBr+4*kc+3}], v14 offset:{kc*64}")
    e(f"ds_read_b64 v[{FBr+16}:{FBr+17}], v15 offset:256")
    e(f"""
    s_mul_i32 s{sA}, s{sB}, 1000
    s_add_u32 s{sA}, s{sA}, s{sR}
    s_lshl_b32 s{sBt}, s{sW}, 1
    s_add_u32 s{sA}, s{sA}, s{sBt}
    s_mul_i32 s{sA}, s{sA}, 2304
    v_mul_u32_u24 v6, 288, v{vM}
    v_add_u32 v6, s{sA}, v6
    v_lshl_add_u32 v7, v{vG_}, 3, v6
    v_lshl_add_u32 v6, v{vG_}, 4, v6
    s_waitcnt lgkmcnt(0)
    """)
    def fe_tail(a): return f"{MF16} v[{FE+4*a}:{FE+4*a+3}], a[{a*18+16}:{a*18+17}], v[{FBr+16}:{FBr+17}], v[{FE+4*a}:{FE+4*a+3}]"
    def fe(s_):
        tiles = [2 * s_, 2 * s_ + 1] if s_ < 4 else [8]
        return [f"{MF32} v[{FE+4*a}:{FE+4*a+3}], a[{a*18+4*kc}:{a*18+4*kc+3}], v[{FBr+4*kc}:{FBr+4*kc+3}], v[{FE+4*a}:{FE+4*a+3}]"
                for kc in range(4) for a in tiles]
    def outm(k):
        r = []
        jb = J + 4 * (k & 1)
        for tau in range(9):
            cin = "0" if k == 0 else f"v[{OA+4*tau}:{OA+4*tau+3}]"
            if k < 4: r.append(f"{MF32} v[{OA+4*tau}:{OA+4*tau+3}], {wo(tau, k, 4)}, v[{jb}:{jb+3}], {cin}")
            else: r.append(f"{MF16} v[{OA+4*tau}:{OA+4*tau+3}], {wo(tau, 4, 2)}, v[{jb}:{jb+1}], {cin}")
        return r
    def tanh(k):
        n = 8 if k < 4 else 4
        src = FE + 8 * k
        jb = J + 4 * (k & 1)
        r = [f"v_mul_f32 v{T+i}, v12, v{src+i}" for i in range(n)]
        r += [f"v_exp_f32 v{T+i}, v{T+i}" for i in range(n)]
        r += [f"v_add_f32 v{T+i}, 1.0, v{T+i}" for i in range(n)]
        r += [f"v_rcp_f32 v{T+i}, v{T+i}" for i in range(n)]
        r += [f"v_fma_f32 v{T+i}, v{T+i}, -2.0, 1.0" for i in range(n)]
        r += [f"v_cvt_pk_bf16_f32 v{jb+i}, v{T+2*i}, v{T+2*i+1}" for i in range(n // 2)]
        return r
    for a in range(9): e(fe_tail(a))
    for m in fe(0): e(m)
    for st in range(1, 7):
        ms = (fe(st) if st <= 4 else []) + (outm(st - 2) if st >= 2 else [])
        vs = tanh(st - 1) if st - 1 <= 4 else []
        lead = 8 if st == 1 else (2 if st < 6 else 0)
        if st == 5: e("s_nop 7")
        if st == 6: e("s_nop 1")
        for m in ms[:lead]: e(m)
        rest = ms[lead:]
        k = 0
        for i, vi in enumerate(vs):
            e(vi)
            want = (i + 1) * len(rest) // len(vs)
            while k < want: e(rest[k]); k += 1
        while k < len(rest): e(rest[k]); k += 1
    tsn(e, "c3end")
    e("s_nop 7")
    for pi in range(4):
        A, B_ = OA + 8 * pi, OA + 8 * pi + 4
        d = 16 + 4 * pi
        e(f"v_cvt_pk_bf16_f32 v{d}, v{A}, v{A+1}")
        e(f"v_cvt_pk_bf16_f32 v{d+1}, v{A+2}, v{A+3}")
        e(f"v_cvt_pk_bf16_f32 v{d+2}, v{B_}, v{B_+1}")
        e(f"v_cvt_pk_bf16_f32 v{d+3}, v{B_+2}, v{B_+3}")
        e(f"buffer_store_dwordx4 v[{d}:{d+3}], v6, s[{SO}:{SO+3}], 0 offen offset:{pi*64}")
    A = OA + 32
    e(f"v_cvt_pk_bf16_f32 v32, v{A}, v{A+1}")
    e(f"v_cvt_pk_bf16_f32 v33, v{A+2}, v{A+3}")
    e(f"buffer_store_dwordx2 v[32:33], v7, s[{SO}:{SO+3}], 0 offen offset:256")

def aux(e):
    e("K1_AUX:")
    e("""
    s_load_dwordx2 s[40:41], s[0:1], 24
    s_load_dwordx2 s[42:43], s[0:1], 40
    v_lshrrev_b32 v6, 6, v0
    v_and_b32 v1, 63, v0
    """)
    e(f"v_readfirstlane_b32 s{sW}, v6")
    lane_parts(e, vL, vM, vG_, vRR, vC4)
    e(f"v_lshlrev_b32 v{vT16}, 4, v0")
    e(f"s_mov_b32 s{sK2}, -128")
    e("s_waitcnt lgkmcnt(0)")
    srd(e, 4, 40, 4608)
    srd(e, 8, 42, 41472)
    srd(e, SWS, 54, M_WS)
    srd(e, 12, 52, 256)
    e(f"s_lshl_b32 s{sW1024}, s{sW}, 10")
    for i in range(11): img_dma(e, 8, i, 0, 6, 7)
    e(f"v_mul_u32_u24 v6, 288, v{vM}")
    e(f"v_lshl_add_u32 v7, v{vG_}, 3, v6")
    e(f"v_lshl_add_u32 v6, v{vG_}, 4, v6")
    GB = 16
    for kc in range(4): e(f"buffer_load_dwordx4 v[{GB+4*kc}:{GB+4*kc+3}], v6, s[4:7], 0 offen offset:{kc*64}")
    e(f"buffer_load_dwordx2 v[{GB+16}:{GB+17}], v7, s[4:7], 0 offen offset:256")
    small_gemm_addr(e, vG_, vRR, vC4, sW, sA, 12, 13, 14, 15, 0)
    e("s_waitcnt vmcnt(0)")
    e("s_barrier")
    D = 40
    small_gemm(e, 12, 13, 14, 15, GB, 64, D)
    e(f"""
    v_mul_u32_u24 v7, 576, v{vM}
    v_lshl_add_u32 v7, v{vG_}, 4, v7
    v_add_u32 v7, {WS_GE}, v7
    s_lshl_b32 s{sA}, s{sW}, 6
    v_add_u32 v8, s{sA}, v7
    v_cmp_eq_u32 vcc, 0, v0
    v_mov_b32 v9, {OOB}
    v_mov_b32 v10, 248
    v_mov_b32 v11, 1
    v_cndmask_b32 v10, v9, v10, vcc
    s_nop 7
    """)
    for t in range(3):
        d = D + 4 * t
        e(f"v_cvt_pk_bf16_f32 v60, v{d}, v{d+1}")
        e(f"v_cvt_pk_bf16_f32 v61, v{d+2}, v{d+3}")
        e(f"v_lshlrev_b32 v{d}, 16, v60")
        e(f"v_and_b32 v{d+1}, 0xffff0000, v60")
        e(f"v_lshlrev_b32 v{d+2}, 16, v61")
        e(f"v_and_b32 v{d+3}, 0xffff0000, v61")
    e(f"buffer_store_dwordx4 v[{D}:{D+3}], v8, s[{SWS}:{SWS+3}], 0 offen sc1")
    e(f"buffer_store_dwordx4 v[{D+4}:{D+7}], v8, s[{SWS}:{SWS+3}], 0 offen offset:256 sc1")
    e(f"buffer_store_dwordx4 v[{D+8}:{D+11}], v7, s[{SWS}:{SWS+3}], 0 offen offset:512 sc1")
    e("s_waitcnt vmcnt(0)")
    e("s_barrier")
    e("buffer_store_dword v11, v10, s[12:15], 0 offen sc1")
    e("s_endpgm")

def gen_m1(e, name):
    e(f"{name}:")
    ts(e, 0)
    prologue(e); conv1(e); reduce_gelu(e); conv2_and_store(e); handoff(e); phase_c(e)
    ts_dump(e, 7, TSB, SWS, sW)
    e("s_endpgm")
    e("K1_DRAIN:")
    e("s_waitcnt vmcnt(0) lgkmcnt(0)")
    e("s_endpgm")
    aux(e)
    e("K1_END:")
    e("s_endpgm")
```
